```python
import torch

def _softmax(x, axis=-1):
    return torch.softmax(x, dim=axis)
def _gelu(x):
    return torch.nn.functional.gelu(x, approximate="tanh")
def _silu(x):
    return torch.nn.functional.silu(x)
def _sigmoid(x):
    return torch.sigmoid(x)
def _layernorm(x, axis=-1, eps=1e-5):
    m = x.mean(dim=axis, keepdim=True)
    v = x.var(dim=axis, keepdim=True, unbiased=False)
    return (x - m) / torch.sqrt(v + eps)
def _scatter_add(tgt, idx, src, axis=0):
    return tgt.clone().index_add_(axis, idx, src)
def _segment_sum(src, seg, n):
    out = torch.zeros((n,) + src.shape[1:], dtype=src.dtype)
    return out.index_add_(0, seg, src)
def _pad(x, pw):
    flat = tuple(v for pair in reversed(pw) for v in pair)
    return torch.nn.functional.pad(x, flat)

kernel_name = 'concat_heads__mha_block_cached__mha_block_cached__decode'

def setup_inputs():

    _w = (lambda a: (lambda t: t.to(torch.bfloat16) if t.is_floating_point() else t)(torch.as_tensor(a)))
    def _A_setup():
        B, Sq, D = 2, 1, 512
        H, Sk, Dh = 32, 8192, 128
        return {
            "x": _w((lambda *s: torch.randn(*s, dtype=torch.bfloat16) * 0.8)(B, Sq, D)),
            "k_cache": _w((lambda *s: torch.randn(*s, dtype=torch.bfloat16) * 0.8)(B, H, Sk, Dh)),
            "v_cache": _w((lambda *s: torch.randn(*s, dtype=torch.bfloat16) * 0.05)(B, H, Sk, Dh)),
            "wq": _w((lambda *s: torch.randn(*s, dtype=torch.bfloat16) * 0.8)(D, H * Dh) * (D ** -0.5)),
            "wo": _w((lambda *s: torch.randn(*s, dtype=torch.bfloat16) * 0.05)(H * Dh, D) * ((H * Dh) ** -0.5)),
        }
    _A_in = _A_setup()

    def _B_setup():
        B, Sq, D = 2, 1, 512
        H, Sk, Dh = 32, 8192, 128
        return {
            "x": _w((lambda *s: torch.randn(*s, dtype=torch.bfloat16) * 0.8)(B, Sq, D)),
            "k_cache": _w((lambda *s: torch.randn(*s, dtype=torch.bfloat16) * 0.8)(B, H, Sk, Dh)),
            "v_cache": _w((lambda *s: torch.randn(*s, dtype=torch.bfloat16) * 0.05)(B, H, Sk, Dh)),
            "wq": _w((lambda *s: torch.randn(*s, dtype=torch.bfloat16) * 0.8)(D, H * Dh) * (D ** -0.5)),
            "wo": _w((lambda *s: torch.randn(*s, dtype=torch.bfloat16) * 0.05)(H * Dh, D) * ((H * Dh) ** -0.5)),
        }
    _B_in = _B_setup()

    return {
        "A_x": _A_in["x"],
        "A_k_cache": _A_in["k_cache"],
        "A_v_cache": _A_in["v_cache"],
        "A_wq": _A_in["wq"],
        "A_wo": _A_in["wo"],
        "B_x": _B_in["x"],
        "B_k_cache": _B_in["k_cache"],
        "B_v_cache": _B_in["v_cache"],
        "B_wq": _B_in["wq"],
        "B_wo": _B_in["wo"],
    }

def reference(A_x, A_k_cache, A_v_cache, A_wq, A_wo, B_x, B_k_cache, B_v_cache, B_wq, B_wo):
    def _A_ref(x, k_cache, v_cache, wq, wo):
        B, Sq, D = x.shape
        H, Dh = 32, 128
        q = (lambda x, *d: x.permute(*d))((x @ wq).reshape(B, Sq, H, Dh), 0, 2, 1, 3)
        scores = torch.einsum("bhqd,bhkd->bhqk", q, k_cache) * (Dh ** -0.5)
        p = _softmax(scores, axis=-1)
        o = torch.einsum("bhqk,bhkd->bhqd", p, v_cache)
        return (lambda x, *d: x.permute(*d))(o, 0, 2, 1, 3).reshape(B, Sq, H * Dh) @ wo

    def _B_ref(x, k_cache, v_cache, wq, wo):
        B, Sq, D = x.shape
        H, Dh = 32, 128
        q = (lambda x, *d: x.permute(*d))((x @ wq).reshape(B, Sq, H, Dh), 0, 2, 1, 3)
        scores = torch.einsum("bhqd,bhkd->bhqk", q, k_cache) * (Dh ** -0.5)
        p = _softmax(scores, axis=-1)
        o = torch.einsum("bhqk,bhkd->bhqd", p, v_cache)
        return (lambda x, *d: x.permute(*d))(o, 0, 2, 1, 3).reshape(B, Sq, H * Dh) @ wo

    a = _A_ref(A_x, A_k_cache, A_v_cache, A_wq, A_wo)
    b = _B_ref(B_x, B_k_cache, B_v_cache, B_wq, B_wo)
    return torch.concatenate([a, b], axis=-1)
```

```python
import sys, struct, math

NAME = "concat_heads__mha_block_cached__mha_block_cached__decode"

HEADER = """; Kernarg layout for this problem (104 bytes, ptrs only, base s[0:1]):
"""


def f32bits(x):
    return struct.unpack("<I", struct.pack("<f", x))[0]


class Asm:
    def __init__(self):
        self.lines = []
        self.nv = 0
        self.maxv = 0

    def __call__(self, s):
        self.lines.append("    " + s)

    def label(self, s):
        self.lines.append(s + ":")

    def comment(self, s):
        self.lines.append("    ; " + s)

    def valloc(self, n=1, align=1):
        self.nv = (self.nv + align - 1) // align * align
        r = self.nv
        self.nv += n
        self.maxv = max(self.maxv, self.nv)
        return r

    def text(self):
        return "\n".join(self.lines) + "\n"


def vr(b, n):
    return f"v[{b}:{b+n-1}]"


def sr(b, n):
    return f"s[{b}:{b+n-1}]"


BLK = 16896
LDS_WO = 0
LDS_QW = 131072
LDS_OA = 135168
OA_STRIDE = 272
LDS_ML = LDS_OA + 16 * OA_STRIDE
LDS_TOTAL = LDS_ML + 64


def gen_attn(n=8, D=2, kvflags="nt", wflags="", pk=True):
    W = 8
    a = Asm()
    C = (128.0 ** -0.5) * math.log2(math.e)
    tile_bytes = n * 1024
    step = W * tile_bytes
    tiles = (1 << 20) // step
    assert tiles % D == 0
    iters = tiles // D
    kf = (" " + kvflags) if kvflags else ""
    wf = (" " + wflags) if wflags else ""

    sWG, sWAVE = 2, 3
    sP = 4
    sWS = 14
    sK, sV, sWQ, sWO, sX, sY = 16, 20, 24, 28, 32, 36
    sT0, sT1, sT2, sT3 = 40, 41, 42, 43
    sC = 44
    sMASK = 45
    sSELLO, sSELHI = 46, 47
    sCNT = 48
    sOFF4K = 49
    sH, sB, sHALF, sPROB = 50, 51, 52, 53
    sSO = 54
    sYOFF = 55
    NSGPR = 56

    a.valloc(1)
    vLANE = a.valloc()
    vOFF = a.valloc()
    vT0 = a.valloc()
    vT1 = a.valloc()
    vT2 = a.valloc()
    vM = a.valloc()
    vL = a.valloc()
    vNMC = a.valloc()
    vMN = a.valloc()
    vAL = a.valloc(2, 2)
    vQ = a.valloc(4, 4)
    vACC = a.valloc(8, 4)
    vS = a.valloc(max(2 * n, 16), 2)
    vU = a.valloc(8, 4)
    vBF = a.valloc(64, 4)
    vRK = [a.valloc(4 * n, 4) for _ in range(D)]
    vRV = [a.valloc(4 * n, 4) for _ in range(D)]
    vXP = vU
    S = lambda j: vS + 2 * j

    k = NAME + "_kernel"
    a.label(k)
    a(f"s_cmp_ge_u32 s{sWG}, 256")
    a("s_cbranch_scc1 L_attn_end")
    a(f"s_and_b32 s{sT0}, s{sWG}, 7")
    a(f"s_lshr_b32 s{sT1}, s{sWG}, 3")
    a(f"s_lshr_b32 s{sPROB}, s{sT0}, 2")
    a(f"s_mul_i32 s{sT2}, s{sPROB}, 40")
    a(f"s_load_dwordx8 {sr(sP, 8)}, s[0:1], s{sT2}")
    a(f"s_load_dwordx2 {sr(sP + 8, 2)}, s[0:1], s{sT2} offset:32")
    a(f"s_load_dwordx2 {sr(sWS, 2)}, s[0:1], 96")
    a(f"s_and_b32 s{sT0}, s{sT0}, 3")
    a(f"s_lshl_b32 s{sT0}, s{sT0}, 3")
    a(f"s_lshr_b32 s{sT3}, s{sT1}, 2")
    a(f"s_add_u32 s{sH}, s{sT0}, s{sT3}")
    a(f"s_bfe_u32 s{sB}, s{sT1}, 0x10001")
    a(f"s_and_b32 s{sHALF}, s{sT1}, 1")
    a(f"v_lshrrev_b32 v{vT0}, 6, v0")
    a(f"v_and_b32 v{vLANE}, 63, v0")
    a(f"v_readfirstlane_b32 s{sWAVE}, v{vT0}")
    a(f"s_mov_b32 s{sC}, {f32bits(C):#x}")
    a(f"s_mov_b32 s{sMASK}, 0xffff0000")
    a(f"s_mov_b32 s{sSELLO}, 0x05040100")
    a(f"s_mov_b32 s{sSELHI}, 0x07060302")
    a(f"s_movk_i32 s{sOFF4K}, 0x1000")
    a(f"v_lshrrev_b32 v{vT0}, 4, v0")
    a(f"v_and_b32 v{vT1}, 15, v0")
    a(f"v_lshlrev_b32 v{vT1}, 4, v{vT1}")
    a(f"v_lshl_add_u32 v{vT1}, v{vT0}, 17, v{vT1}")
    a(f"v_lshlrev_b32 v{vT2}, 5, v{vT0}")
    a(f"v_lshlrev_b32 v{vOFF}, 4, v{vLANE}")
    a(f"s_mul_i32 s{sT0}, s{sWAVE}, {tile_bytes}")
    a(f"v_add_u32 v{vOFF}, s{sT0}, v{vOFF}")
    a(f"s_lshl_b32 s{sT0}, s{sB}, 26")
    a(f"s_lshl_b32 s{sT1}, s{sH}, 21")
    a(f"s_lshl_b32 s{sT2}, s{sHALF}, 20")
    a(f"s_add_u32 s{sT0}, s{sT0}, s{sT1}")
    a(f"s_add_u32 s{sT0}, s{sT0}, s{sT2}")
    a(f"s_lshl_b32 s{sT1}, s{sH}, 8")
    a(f"s_lshl_b32 s{sT2}, s{sB}, 10")
    a(f"s_lshl_b32 s{sT3}, s{sH}, 17")
    for r, nrec in ((sK, 1 << 20), (sV, 1 << 20), (sWQ, 511 * 8192 + 256), (sWO, 131072), (sX, 1024), (sY, 32 * BLK)):
        a(f"s_mov_b32 s{r+2}, {nrec:#x}")
        a(f"s_mov_b32 s{r+3}, 0x00020000")
    a("s_waitcnt lgkmcnt(0)")
    a(f"s_add_u32 s{sX}, s{sP}, s{sT2}")
    a(f"s_addc_u32 s{sX+1}, s{sP+1}, 0")
    a(f"s_add_u32 s{sWQ}, s{sP+6}, s{sT1}")
    a(f"s_addc_u32 s{sWQ+1}, s{sP+7}, 0")
    a(f"buffer_load_dwordx4 {vr(vXP,4)}, v{vT2}, {sr(sX,4)}, 0 offen")
    a(f"buffer_load_dwordx4 {vr(vXP+4,4)}, v{vT2}, {sr(sX,4)}, 0 offen offset:16")
    a(f"s_mov_b32 s{sSO}, 0")
    for j in range(16):
        a(f"buffer_load_dwordx4 {vr(vBF+4*j,4)}, v{vT1}, {sr(sWQ,4)}, s{sSO} offen{wf}")
        if j < 15:
            a(f"s_add_u32 s{sSO}, s{sSO}, 0x2000")
    a(f"s_add_u32 s{sK}, s{sP+2}, s{sT0}")
    a(f"s_addc_u32 s{sK+1}, s{sP+3}, 0")
    a(f"s_add_u32 s{sV}, s{sP+4}, s{sT0}")
    a(f"s_addc_u32 s{sV+1}, s{sP+5}, 0")

    def issue(srd, base):
        for j in range(n):
            so = "0" if j < 4 else f"s{sOFF4K}"
            assert j < 8
            a(f"buffer_load_dwordx4 {vr(base+4*j,4)}, v{vOFF}, {sr(srd,4)}, {so} offen offset:{(j%4)*1024}{kf}")

    for d in range(D):
        issue(sK, vRK[d])
        issue(sV, vRV[d])
        a(f"v_add_u32 v{vOFF}, {step:#x}, v{vOFF}")
    a(f"s_add_u32 s{sWO}, s{sP+8}, s{sT3}")
    a(f"s_addc_u32 s{sWO+1}, s{sP+9}, 0")
    a(f"s_mov_b32 s{sY}, s{sWS}")
    a(f"s_mov_b32 s{sY+1}, s{sWS+1}")
    a(f"v_lshrrev_b32 v{vT0}, 3, v{vLANE}")
    a(f"v_lshlrev_b32 v{vT0}, 10, v{vT0}")
    a(f"v_and_b32 v{vT1}, 7, v{vLANE}")
    a(f"v_lshrrev_b32 v{vT2}, 3, v{vLANE}")
    a(f"v_and_b32 v{vT2}, 2, v{vT2}")
    a(f"v_xor_b32 v{vT1}, v{vT1}, v{vT2}")
    a(f"v_lshl_add_u32 v{vT0}, v{vT1}, 4, v{vT0}")
    a(f"s_lshl_b32 s{sT0}, s{sWAVE}, 7")
    a(f"v_add_u32 v{vT0}, s{sT0}, v{vT0}")
    a(f"v_xor_b32 v{vT1}, 64, v{vT0}")
    a(f"s_lshl_b32 s{sT0}, s{sWAVE}, 14")
    a(f"s_mov_b32 s{sSO}, 0")
    a(f"v_mov_b32 v{vM}, 0xff7fffff")
    a(f"v_mov_b32 v{vL}, 0")
    for i in range(8):
        a(f"v_mov_b32 v{vACC+i}, 0")
    a(f"s_waitcnt vmcnt({2*D*n})")
    for q in range(16):
        a(f"s_mov_b32 m0, s{sT0}")
        a(f"s_add_u32 s{sT0}, s{sT0}, 0x400")
        a(f"buffer_load_dwordx4 v{vT0 if q % 2 == 0 else vT1}, {sr(sWO,4)}, s{sSO} offen{wf} lds")
        if q < 15:
            a(f"s_add_u32 s{sSO}, s{sSO}, 0x2000")
    for i in range(8):
        for e in range(4):
            w0 = vBF + 4 * (2 * i) + e
            w1 = vBF + 4 * (2 * i + 1) + e
            a(f"v_perm_b32 v{S(0)+ (2*e)}, v{w1}, v{w0}, s{sSELLO}")
            a(f"v_perm_b32 v{S(0)+ (2*e+1)}, v{w1}, v{w0}, s{sSELHI}")
        for e in range(8):
            a(f"v_dot2c_f32_bf16 v{vACC+e}, v{S(0)+e}, v{vXP+i}")
    a("s_nop 2")

    def rowreduce8(acc, u0, u1):
        a(f"v_permlane32_swap_b32 v{acc+0}, v{acc+4}")
        a(f"v_permlane32_swap_b32 v{acc+2}, v{acc+6}")
        a(f"v_permlane32_swap_b32 v{acc+1}, v{acc+5}")
        a(f"v_permlane32_swap_b32 v{acc+3}, v{acc+7}")
        a(f"v_add_f32 v{acc+0}, v{acc+0}, v{acc+4}")
        a(f"v_add_f32 v{acc+2}, v{acc+2}, v{acc+6}")
        a(f"v_add_f32 v{acc+1}, v{acc+1}, v{acc+5}")
        a(f"v_add_f32 v{acc+3}, v{acc+3}, v{acc+7}")
        a("s_nop 1")
        a(f"v_permlane16_swap_b32 v{acc+0}, v{acc+2}")
        a(f"v_permlane16_swap_b32 v{acc+1}, v{acc+3}")
        a("s_nop 0")
        a(f"v_add_f32 v{u0}, v{acc+0}, v{acc+2}")
        a(f"v_add_f32 v{u1}, v{acc+1}, v{acc+3}")

    rowreduce8(vACC, vU, vU + 1)
    a(f"v_and_b32 v{vT0}, 15, v{vLANE}")
    a(f"v_lshrrev_b32 v{vT1}, 4, v{vLANE}")
    a(f"v_lshlrev_b32 v{vT0}, 5, v{vT0}")
    a(f"v_lshl_add_u32 v{vT0}, v{vT1}, 3, v{vT0}")
    a(f"v_add_u32 v{vT0}, {LDS_QW:#x}, v{vT0}")
    a(f"s_lshl_b32 s{sT0}, s{sWAVE}, 9")
    a(f"v_add_u32 v{vT1}, s{sT0}, v{vT0}")
    a(f"ds_write_b64 v{vT1}, {vr(vU,2)}")
    for i in range(8):
        a(f"v_mov_b32 v{vACC+i}, 0")
    a("s_waitcnt lgkmcnt(0)")
    a("s_barrier")
    for w in range(8):
        a(f"ds_read_b64 {vr(vS+2*w,2)}, v{vT0} offset:{w*512}")
    a("s_waitcnt lgkmcnt(0)")
    for w in range(1, 8):
        a(f"v_add_f32 v{vS}, v{vS}, v{vS+2*w}")
        a(f"v_add_f32 v{vS+1}, v{vS+1}, v{vS+2*w+1}")
    a(f"v_cvt_pk_bf16_f32 v{vQ}, v{vS}, v{vS+1}")
    a("s_nop 0")
    a(f"v_mov_b32 v{vQ+1}, v{vQ}")
    a("s_nop 1")
    a(f"v_permlane16_swap_b32 v{vQ}, v{vQ+1}")
    a("s_nop 0")
    a(f"v_mov_b32 v{vQ+2}, v{vQ}")
    a(f"v_mov_b32 v{vQ+3}, v{vQ+1}")
    a("s_nop 1")
    a(f"v_permlane32_swap_b32 v{vQ}, v{vQ+2}")
    a(f"v_permlane32_swap_b32 v{vQ+1}, v{vQ+3}")
    vA = [a.valloc() for _ in range(4)]
    a(f"v_lshrrev_b32 v{vT0}, 4, v{vLANE}")
    a(f"v_bfe_u32 v{vT1}, v{vLANE}, 2, 2")
    a(f"v_lshl_add_u32 v{vT1}, v{vT0}, 3, v{vT1}")
    a(f"v_lshlrev_b32 v{vT1}, 7, v{vT1}")
    a(f"v_bfe_u32 v{vT2}, v{vLANE}, 3, 2")
    a(f"v_lshl_add_u32 v{vT1}, v{vT2}, 5, v{vT1}")
    a(f"v_and_b32 v{vT2}, 3, v{vLANE}")
    a(f"v_lshl_add_u32 v{vT1}, v{vT2}, 3, v{vT1}")
    a(f"s_lshl_b32 s{sT0}, s{sWAVE}, 14")
    a(f"v_add_u32 v{vA[0]}, s{sT0}, v{vT1}")
    for t in range(1, 4):
        a(f"v_xor_b32 v{vA[t]}, {t<<5}, v{vA[0]}")
    a(f"s_mov_b32 s{sCNT}, 0")

    a.lines.append(".p2align 6")
    a.label("L_loop")
    WAIT = (2 * D - 1) * n
    for d in range(D):
        K, V = vRK[d], vRV[d]
        a(f"s_waitcnt vmcnt({WAIT})")
        for kk in range(4):
            for j in range(n):
                if kk == 0:
                    a(f"v_dot2_f32_bf16 v{S(j)}, v{K+4*j}, v{vQ}, 0")
                else:
                    a(f"v_dot2c_f32_bf16 v{S(j)}, v{K+4*j+kk}, v{vQ+kk}")
        issue(sK, K)
        for st in (8, 4, 2, 1):
            for j in range(n):
                a(f"v_add_f32_dpp v{S(j)}, v{S(j)}, v{S(j)} row_ror:{st} row_mask:0xf bank_mask:0xf")
        a(f"v_max3_f32 v{vMN}, v{S(0)}, v{S(1)}, v{vM}")
        for j in range(2, n, 2):
            a(f"v_max3_f32 v{vMN}, v{S(j)}, v{S(j+1)}, v{vMN}")
        a(f"v_mul_f32 v{vNMC}, s{sC}, v{vMN}")
        a(f"v_fma_f32 v{vAL}, v{vM}, s{sC}, -v{vNMC}")
        for j in range(n):
            a(f"v_fma_f32 v{S(j)}, v{S(j)}, s{sC}, -v{vNMC}")
        a(f"v_exp_f32 v{vAL}, v{vAL}")
        for j in range(n):
            a(f"v_exp_f32 v{S(j)}, v{S(j)}")
        a(f"v_mov_b32 v{vM}, v{vMN}")
        if pk:
            for i in range(0, 8, 2):
                a(f"v_pk_mul_f32 {vr(vACC+i,2)}, {vr(vACC+i,2)}, {vr(vAL,2)} op_sel_hi:[1,0]")
        else:
            for i in range(8):
                a(f"v_mul_f32 v{vACC+i}, v{vAL}, v{vACC+i}")
        a(f"v_fma_f32 v{vL}, v{vL}, v{vAL}, v{S(0)}")
        for j in range(1, n):
            a(f"v_add_f32 v{vL}, v{vL}, v{S(j)}")
        if d == 0:
            a(f"s_cmp_lg_u32 s{sCNT}, 1")
            a("s_cbranch_scc1 L_nobf")
            for s in range(4):
                for t in range(4):
                    for h in range(2):
                        a(f"ds_read_b64_tr_b16 {vr(vBF+16*s+4*t+2*h,2)}, v{vA[t]} offset:{4096*s+512*h}")
            a.label("L_nobf")
        a(f"s_waitcnt vmcnt({WAIT})")
        for j in range(n):
            for e in range(4):
                a(f"v_lshlrev_b32 v{vU+2*e}, 16, v{V+4*j+e}")
                a(f"v_and_b32 v{vU+2*e+1}, s{sMASK}, v{V+4*j+e}")
            if pk:
                for e in range(4):
                    a(f"v_pk_fma_f32 {vr(vACC+2*e,2)}, {vr(vU+2*e,2)}, {vr(S(j),2)}, {vr(vACC+2*e,2)} op_sel_hi:[1,0,1]")
            else:
                for e in range(8):
                    a(f"v_fmac_f32 v{vACC+e}, v{S(j)}, v{vU+e}")
        issue(sV, V)
        a(f"v_add_u32 v{vOFF}, {step:#x}, v{vOFF}")
    a(f"s_add_u32 s{sCNT}, s{sCNT}, 1")
    a(f"s_cmp_lt_u32 s{sCNT}, {iters}")
    a("s_cbranch_scc1 L_loop")

    a(f"v_mul_f32 v{vM}, s{sC}, v{vM}")
    a("s_nop 0")
    a(f"v_mov_b32 v{vT0}, v{vM}")
    a(f"v_mov_b32 v{vT1}, v{vM}")
    a("s_nop 1")
    a(f"v_permlane32_swap_b32 v{vT0}, v{vT1}")
    a("s_nop 0")
    a(f"v_max_f32 v{vT0}, v{vT0}, v{vT1}")
    a("s_nop 0")
    a(f"v_mov_b32 v{vT1}, v{vT0}")
    a("s_nop 1")
    a(f"v_permlane16_swap_b32 v{vT0}, v{vT1}")
    a("s_nop 0")
    a(f"v_max_f32 v{vS}, v{vT0}, v{vT1}")
    a(f"v_sub_f32 v{vAL}, v{vM}, v{vS}")
    a(f"v_exp_f32 v{vAL}, v{vAL}")
    a("s_nop 0")
    a(f"v_mul_f32 v{vT0}, v{vAL}, v{vL}")
    for i in range(8):
        a(f"v_mul_f32 v{vACC+i}, v{vAL}, v{vACC+i}")
    a(f"v_mov_b32 v{vT1}, v{vT0}")
    a("s_nop 1")
    a(f"v_permlane32_swap_b32 v{vT0}, v{vT1}")
    rowreduce8(vACC, vU, vU + 1)
    a(f"v_add_f32 v{vT0}, v{vT0}, v{vT1}")
    a(f"v_cvt_pk_bf16_f32 v{vU+2}, v{vU}, v{vU+1}")
    a(f"v_mov_b32 v{vT1}, v{vT0}")
    a(f"v_lshlrev_b32 v{vU+4}, 16, v{vU+2}")
    a(f"v_and_b32 v{vU+5}, s{sMASK}, v{vU+2}")
    a(f"v_permlane16_swap_b32 v{vT0}, v{vT1}")
    a(f"v_sub_f32 v{vU+4}, v{vU}, v{vU+4}")
    a(f"v_sub_f32 v{vU+5}, v{vU+1}, v{vU+5}")
    a(f"v_add_f32 v{vS+1}, v{vT0}, v{vT1}")
    a(f"v_cvt_pk_bf16_f32 v{vU+3}, v{vU+4}, v{vU+5}")
    a(f"v_and_b32 v{vT0}, 15, v{vLANE}")
    a(f"v_lshrrev_b32 v{vT1}, 4, v{vLANE}")
    a(f"v_lshlrev_b32 v{vT2}, 4, v{vT0}")
    a(f"v_lshl_add_u32 v{vT2}, v{vT1}, 2, v{vT2}")
    a(f"s_mul_i32 s{sT0}, s{sWAVE}, {OA_STRIDE}")
    a(f"s_add_u32 s{sT0}, s{sT0}, {LDS_OA:#x}")
    a(f"v_add_u32 v{vT2}, s{sT0}, v{vT2}")
    a(f"ds_write_b32 v{vT2}, v{vU+2}")
    a(f"ds_write_b32 v{vT2}, v{vU+3} offset:{8*OA_STRIDE}")
    a(f"s_lshl_b32 s{sT0}, s{sWAVE}, 3")
    a(f"s_add_u32 s{sT0}, s{sT0}, {LDS_ML:#x}")
    a(f"v_mov_b32 v{vT2}, s{sT0}")
    a("s_mov_b64 exec, 1")
    a(f"ds_write_b64 v{vT2}, {vr(vS,2)}")
    a("s_mov_b64 exec, -1")
    a(f"v_mul_u32_u24 v{vT0}, {OA_STRIDE}, v{vT0}")
    a(f"v_lshl_add_u32 v{vT0}, v{vT1}, 4, v{vT0}")
    a(f"v_add_u32 v{vT0}, {LDS_OA:#x}, v{vT0}")
    a(f"v_and_b32 v{vT1}, 1, v{vT1}")
    a(f"v_lshlrev_b32 v{vT1}, 5, v{vT1}")
    a(f"v_add_u32 v{vT1}, {LDS_ML:#x}, v{vT1}")
    a(f"v_xor_b32 v{vT2}, 32, v{vT1}")
    a(f"s_lshl_b32 s{sT0}, s{sPROB}, 1")
    a(f"s_add_u32 s{sT0}, s{sT0}, s{sB}")
    a(f"s_lshl_b32 s{sT0}, s{sT0}, 3")
    a(f"s_add_u32 s{sT0}, s{sT0}, s{sWAVE}")
    a(f"s_mul_i32 s{sYOFF}, s{sT0}, {BLK}")
    a(f"s_lshl_b32 s{sT1}, s{sH}, 1")
    a(f"s_add_u32 s{sT1}, s{sT1}, s{sHALF}")
    a(f"s_and_b32 s{sT2}, s{sT1}, 15")
    a(f"s_lshl_b32 s{sT2}, s{sT2}, 2")
    a(f"s_lshr_b32 s{sT3}, s{sT1}, 4")
    a(f"s_add_u32 s{sT2}, s{sT2}, s{sT3}")
    a(f"s_lshl_b32 s{sT2}, s{sT2}, 8")
    a(f"s_add_u32 s{sT2}, s{sT2}, s{sYOFF}")
    a(f"s_lshl_b32 s{sT1}, s{sT1}, 3")
    a(f"s_add_u32 s{sT1}, s{sT1}, s{sYOFF}")
    a(f"s_add_u32 s{sT1}, s{sT1}, 0x4000")
    a("s_waitcnt vmcnt(0) lgkmcnt(0)")
    a("s_barrier")
    vAF = vRK[0]
    vML = vRK[0] + 16
    vD = vRV[0]
    vSC = vRV[0] + 16
    for s in range(4):
        a(f"ds_read_b128 {vr(vAF+4*s,4)}, v{vT0} offset:{64*s}")
    a(f"ds_read_b128 {vr(vML,4)}, v{vT1}")
    a(f"ds_read_b128 {vr(vML+4,4)}, v{vT1} offset:16")
    a(f"ds_read_b128 {vr(vML+8,4)}, v{vT2}")
    a(f"ds_read_b128 {vr(vML+12,4)}, v{vT2} offset:16")
    for s in range(4):
        a(f"s_waitcnt lgkmcnt({7-s})")
        for t in range(4):
            c = "0" if s == 0 else vr(vD + 4 * t, 4)
            a(f"v_mfma_f32_16x16x32_bf16 {vr(vD+4*t,4)}, {vr(vAF+4*s,4)}, {vr(vBF+16*s+4*t,4)}, {c}")
    a("s_waitcnt lgkmcnt(0)")
    a(f"v_max3_f32 v{vMN}, v{vML}, v{vML+2}, v{vML+4}")
    a(f"v_max3_f32 v{vMN}, v{vML+6}, v{vML+8}, v{vMN}")
    a(f"v_max3_f32 v{vMN}, v{vML+10}, v{vML+12}, v{vMN}")
    a(f"v_max_f32 v{vS}, v{vML+14}, v{vMN}")
    for r in range(8):
        a(f"v_sub_f32 v{vSC+r}, v{vML+2*r}, v{vS}")
    for r in range(8):
        a(f"v_exp_f32 v{vSC+r}, v{vSC+r}")
    a(f"v_mul_f32 v{vS+1}, v{vSC}, v{vML+1}")
    for r in range(1, 8):
        a(f"v_fmac_f32 v{vS+1}, v{vSC+r}, v{vML+2*r+1}")
    a(f"v_lshlrev_b32 v{vT0}, 2, v{vLANE}")
    for t in range(4):
        a(f"v_mul_f32 v{vU+t}, v{vSC}, v{vD+4*t}")
    for r in range(1, 4):
        for t in range(4):
            a(f"v_fmac_f32 v{vU+t}, v{vSC+r}, v{vD+4*t+r}")
    a("s_nop 0")
    a(f"v_permlane32_swap_b32 v{vU}, v{vU+2}")
    a(f"v_permlane32_swap_b32 v{vU+1}, v{vU+3}")
    a("s_nop 0")
    a(f"v_add_f32 v{vU}, v{vU}, v{vU+2}")
    a(f"v_add_f32 v{vU+1}, v{vU+1}, v{vU+3}")
    a("s_nop 1")
    a(f"v_permlane16_swap_b32 v{vU}, v{vU+1}")
    a("s_nop 0")
    a(f"v_add_f32 v{vU}, v{vU}, v{vU+1}")
    a(f"buffer_store_dword v{vU}, v{vT0}, {sr(sY,4)}, s{sT2} offen")
    a("s_mov_b64 exec, 1")
    a(f"buffer_store_dwordx2 {vr(vS,2)}, v{vT0}, {sr(sY,4)}, s{sT1} offen")
    a.label("L_attn_end")
    a("s_endpgm")
    return a, NSGPR


def gen_reduce():
    a = Asm()
    a.valloc(1)
    vOFF = a.valloc()
    vT0 = a.valloc()
    vT1 = a.valloc()
    vW = a.valloc()
    vML = a.valloc(4, 4)
    vACC = a.valloc(4, 4)
    vY = a.valloc(64, 4)
    a.label("reduce_kernel")
    a("s_cmp_ge_u32 s2, 32")
    a("s_cbranch_scc1 L_red_end")
    a("s_load_dwordx2 s[4:5], s[0:1], 80")
    a("s_load_dwordx2 s[6:7], s[0:1], 96")
    a(f"s_mul_i32 s3, s2, {BLK}")
    a(f"v_lshlrev_b32 v{vOFF}, 4, v0")
    a(f"v_lshrrev_b32 v{vT0}, 1, v0")
    a(f"v_lshlrev_b32 v{vT0}, 4, v{vT0}")
    a(f"s_mov_b32 s10, {BLK}")
    a("s_mov_b32 s11, 0x00020000")
    a("s_mov_b32 s14, 4096")
    a("s_mov_b32 s15, 0x00020000")
    a("s_movk_i32 s16, 0x1000")
    a("s_movk_i32 s17, 0x2000")
    a("s_movk_i32 s18, 0x3000")
    a("s_movk_i32 s19, 0x4000")
    a("s_waitcnt lgkmcnt(0)")
    a("s_add_u32 s8, s6, s3")
    a("s_addc_u32 s9, s7, 0")
    a(f"buffer_load_dwordx4 {vr(vML,4)}, v{vT0}, s[8:11], s19 offen")
    for i in range(16):
        so = "0" if i < 4 else f"s{15 + i // 4}"
        a(f"buffer_load_dwordx4 {vr(vY+4*i,4)}, v{vOFF}, s[8:11], {so} offen offset:{(i%4)*1024}")
    a("s_mov_b32 s12, s4")
    a("s_mov_b32 s13, s5")
    a("s_bfe_u32 s20, s2, 0x10003")
    a("s_lshl_b32 s20, s20, 11")
    a("s_lshr_b32 s21, s2, 4")
    a("s_lshl_b32 s21, s21, 10")
    a("s_add_u32 s20, s20, s21")
    a("s_and_b32 s21, s2, 7")
    a("s_lshl_b32 s21, s21, 7")
    a("s_add_u32 s20, s20, s21")
    a(f"v_and_b32 v{vT0}, 15, v0")
    a(f"v_lshrrev_b32 v{vT1}, 4, v0")
    a(f"v_lshl_add_u32 v{vOFF}, v{vT0}, 2, v{vT1}")
    a(f"v_lshlrev_b32 v{vOFF}, 1, v{vOFF}")
    a(f"v_and_b32 v{vT0}, 1, v0")
    a(f"v_cmp_eq_u32 vcc, 1, v{vT0}")
    a("s_waitcnt vmcnt(16)")
    a(f"v_max_f32 v{vT0}, v{vML}, v{vML+2}")
    a(f"v_sub_f32 v{vML}, v{vML}, v{vT0}")
    a(f"v_sub_f32 v{vML+2}, v{vML+2}, v{vT0}")
    a(f"v_exp_f32 v{vML}, v{vML}")
    a(f"v_exp_f32 v{vML+2}, v{vML+2}")
    a("s_nop 0")
    a(f"v_mul_f32 v{vT0}, v{vML}, v{vML+1}")
    a(f"v_fmac_f32 v{vT0}, v{vML+2}, v{vML+3}")
    a(f"v_rcp_f32 v{vT0}, v{vT0}")
    a(f"v_cndmask_b32 v{vW}, v{vML}, v{vML+2}, vcc")
    a(f"v_mul_f32 v{vW}, v{vW}, v{vT0}")
    for e in range(4):
        a(f"v_mov_b32 v{vACC+e}, 0")
    for i in range(16):
        a(f"s_waitcnt vmcnt({15-i})")
        for e in range(4):
            a(f"v_fmac_f32_dpp v{vACC+e}, v{vW}, v{vY+4*i+e} row_newbcast:{i} row_mask:0xf bank_mask:0xf")
    a("s_nop 1")
    a(f"v_permlane32_swap_b32 v{vACC}, v{vACC+2}")
    a(f"v_permlane32_swap_b32 v{vACC+1}, v{vACC+3}")
    a("s_nop 0")
    a(f"v_add_f32 v{vACC}, v{vACC}, v{vACC+2}")
    a(f"v_add_f32 v{vACC+1}, v{vACC+1}, v{vACC+3}")
    a("s_nop 1")
    a(f"v_permlane16_swap_b32 v{vACC}, v{vACC+1}")
    a("s_nop 0")
    a(f"v_add_f32 v{vACC}, v{vACC}, v{vACC+1}")
    a(f"v_cvt_pk_bf16_f32 v{vACC}, v{vACC}, v{vACC}")
    a(f"buffer_store_short v{vACC}, v{vOFF}, s[12:15], s20 offen")
    a.label("L_red_end")
    a("s_endpgm")
    return a, 24


def kd(name, a, nsgpr):
    nv = a.maxv
    return f""".amdhsa_kernel {name}
  .amdhsa_next_free_vgpr {nv}
  .amdhsa_next_free_sgpr {nsgpr}
  .amdhsa_accum_offset {(nv + 3) // 4 * 4}
  .amdhsa_group_segment_fixed_size 0
  .amdhsa_kernarg_size 104
  .amdhsa_user_sgpr_count 2
  .amdhsa_user_sgpr_kernarg_segment_ptr 1
  .amdhsa_system_sgpr_workgroup_id_x 1
.end_amdhsa_kernel
"""


def build(**kw):
    a1, s1 = gen_attn(**kw)
    a2, s2 = gen_reduce()
    k1 = NAME + "_kernel"
    out = HEADER
    out += f"; @launch kernel={k1} grid=(256,1,1) block=(512,1,1) lds={LDS_TOTAL}\n"
    out += "; @launch kernel=reduce_kernel grid=(32,1,1) block=(64,1,1) lds=0\n"
    out += '.amdgcn_target "amdgcn-amd-amdhsa--gfx950"\n.text\n'
    out += f".globl {k1}\n.p2align 8\n.type {k1},@function\n" + a1.text()
    out += ".globl reduce_kernel\n.p2align 8\n.type reduce_kernel,@function\n" + a2.text()
    out += '.section .rodata,"a"\n.p2align 6\n' + kd(k1, a1, s1) + ".p2align 6\n" + kd("reduce_kernel", a2, s2)
    return out


if __name__ == "__main__":
    import argparse
    ap = argparse.ArgumentParser()
    ap.add_argument("-o", default=f"cdna_kernels/{NAME}.s")
    ap.add_argument("--n", type=int, default=8)
    ap.add_argument("--D", type=int, default=2)
    ap.add_argument("--kv", default="nt")
    ap.add_argument("--wf", default="")
    ap.add_argument("--nopk", action="store_true")
    args = ap.parse_args()
    open(args.o, "w").write(build(n=args.n, D=args.D, kvflags=args.kv, wflags=args.wf, pk=not args.nopk))
```

```python
import sys, struct, math

NAME = "concat_heads__mha_block_cached__mha_block_cached__decode"

HEADER = """; Kernarg layout for this problem (104 bytes, ptrs only, base s[0:1]):
"""


def f32bits(x):
    return struct.unpack("<I", struct.pack("<f", x))[0]


class Asm:
    def __init__(self):
        self.lines = []
        self.nv = 0
        self.maxv = 0

    def __call__(self, s):
        self.lines.append("    " + s)

    def label(self, s):
        self.lines.append(s + ":")

    def comment(self, s):
        self.lines.append("    ; " + s)

    def valloc(self, n=1, align=1):
        self.nv = (self.nv + align - 1) // align * align
        r = self.nv
        self.nv += n
        self.maxv = max(self.maxv, self.nv)
        return r

    def text(self):
        return "\n".join(self.lines) + "\n"


def vr(b, n):
    return f"v[{b}:{b+n-1}]"


def sr(b, n):
    return f"s[{b}:{b+n-1}]"


BLK = 16896
LDS_WO = 0
LDS_QW = 131072
LDS_OA = 135168
OA_STRIDE = 272
LDS_ML = LDS_OA + 16 * OA_STRIDE
LDS_TOTAL = LDS_ML + 64


def gen_attn(n=8, D=2, kvflags="nt", wflags="", pk=True, diag=False, wo="late", pbar=False, wmap="xcd", noq=False, rot=0):
    W = 8
    a = Asm()
    C = (128.0 ** -0.5) * math.log2(math.e)
    tile_bytes = n * 1024
    step = W * tile_bytes
    tiles = (1 << 20) // step
    assert tiles % D == 0
    iters = tiles // D
    sM0N = 66
    kf = (" " + kvflags) if kvflags else ""
    wf = (" " + wflags) if wflags else ""

    sWG, sWAVE = 2, 3
    sP = 4
    sWS = 14
    sK, sV, sWQ, sWO, sX, sY = 16, 20, 24, 28, 32, 36
    sT0, sT1, sT2, sT3 = 40, 41, 42, 43
    sC = 44
    sMASK = 45
    sSELLO, sSELHI = 46, 47
    sCNT = 48
    sOFF4K = 49
    sH, sB, sHALF, sPROB = 50, 51, 52, 53
    sSO = 54
    sYOFF = 55
    NSGPR = 56
    sROT, sTI, sRT = 72, 73, 74
    if wo == "spread":
        NSGPR = 68
    sST = 56
    if diag:
        NSGPR = 72
    if rot:
        NSGPR = 76

    def stamp(i):
        if diag:
            a(f"s_memrealtime {sr(sST+2*i,2)}")

    a.valloc(1)
    vLANE = a.valloc()
    vOFF = a.valloc()
    vT0 = a.valloc()
    vT1 = a.valloc()
    vT2 = a.valloc()
    vM = a.valloc()
    vL = a.valloc()
    vNMC = a.valloc()
    vMN = a.valloc()
    vAL = a.valloc(2, 2)
    vQ = a.valloc(4, 4)
    vACC = a.valloc(8, 4)
    vS = a.valloc(max(2 * n, 16), 2)
    vU = a.valloc(8, 4)
    vBF = a.valloc(64, 4)
    vRK = [a.valloc(4 * n, 4) for _ in range(D)]
    vRV = [a.valloc(4 * n, 4) for _ in range(D)]
    vXP = vU
    S = lambda j: vS + 2 * j

    k = NAME + "_kernel"
    a.label(k)
    a(f"s_cmp_ge_u32 s{sWG}, 256")
    a("s_cbranch_scc1 L_attn_end")
    stamp(0)
    if wmap.startswith("p"):
        bits = [int(c) for c in wmap[1:]]
        assert sorted(bits) == list(range(8))
        a(f"s_bfe_u32 s{sPROB}, s{sWG}, {0x10000 | bits[7]:#x}")
    elif wmap == "xcd":
        a(f"s_and_b32 s{sT0}, s{sWG}, 7")
        a(f"s_lshr_b32 s{sT1}, s{sWG}, 3")
        a(f"s_lshr_b32 s{sPROB}, s{sT0}, 2")
    elif wmap == "xcd2":
        a(f"s_and_b32 s{sT0}, s{sWG}, 7")
        a(f"s_lshr_b32 s{sT1}, s{sWG}, 3")
        a(f"s_lshr_b32 s{sPROB}, s{sT1}, 4")
    else:
        a(f"s_lshr_b32 s{sPROB}, s{sWG}, 7")
    a(f"s_mul_i32 s{sT2}, s{sPROB}, 40")
    a(f"s_load_dwordx8 {sr(sP, 8)}, s[0:1], s{sT2}")
    a(f"s_load_dwordx2 {sr(sP + 8, 2)}, s[0:1], s{sT2} offset:32")
    a(f"s_load_dwordx2 {sr(sWS, 2)}, s[0:1], 96")
    if wmap.startswith("p"):
        a(f"s_bfe_u32 s{sHALF}, s{sWG}, {0x10000 | bits[0]:#x}")
        a(f"s_bfe_u32 s{sB}, s{sWG}, {0x10000 | bits[1]:#x}")
        a(f"s_bfe_u32 s{sH}, s{sWG}, {0x10000 | bits[2]:#x}")
        for i in range(1, 5):
            a(f"s_bfe_u32 s{sT3}, s{sWG}, {0x10000 | bits[2+i]:#x}")
            a(f"s_lshl_b32 s{sT3}, s{sT3}, {i}")
            a(f"s_or_b32 s{sH}, s{sH}, s{sT3}")
    elif wmap == "xcd":
        a(f"s_and_b32 s{sT0}, s{sT0}, 3")
        a(f"s_lshl_b32 s{sT0}, s{sT0}, 3")
        a(f"s_lshr_b32 s{sT3}, s{sT1}, 2")
        a(f"s_add_u32 s{sH}, s{sT0}, s{sT3}")
        a(f"s_bfe_u32 s{sB}, s{sT1}, 0x10001")
        a(f"s_and_b32 s{sHALF}, s{sT1}, 1")
    elif wmap == "xcd2":
        a(f"s_bfe_u32 s{sT3}, s{sT1}, 0x20002")
        a(f"s_lshl_b32 s{sT3}, s{sT3}, 3")
        a(f"s_add_u32 s{sH}, s{sT0}, s{sT3}")
        a(f"s_bfe_u32 s{sB}, s{sT1}, 0x10001")
        a(f"s_and_b32 s{sHALF}, s{sT1}, 1")
    else:
        a(f"s_bfe_u32 s{sB}, s{sWG}, 0x10006")
        a(f"s_bfe_u32 s{sH}, s{sWG}, 0x50001")
        a(f"s_and_b32 s{sHALF}, s{sWG}, 1")
    a(f"v_lshrrev_b32 v{vT0}, 6, v0")
    a(f"v_and_b32 v{vLANE}, 63, v0")
    a(f"v_readfirstlane_b32 s{sWAVE}, v{vT0}")
    a(f"s_mov_b32 s{sC}, {f32bits(C):#x}")
    a(f"s_mov_b32 s{sMASK}, 0xffff0000")
    a(f"s_mov_b32 s{sSELLO}, 0x05040100")
    a(f"s_mov_b32 s{sSELHI}, 0x07060302")
    a(f"s_movk_i32 s{sOFF4K}, 0x1000")
    a(f"v_lshrrev_b32 v{vT0}, 4, v0")
    a(f"v_and_b32 v{vT1}, 15, v0")
    a(f"v_lshlrev_b32 v{vT1}, 4, v{vT1}")
    a(f"v_lshl_add_u32 v{vT1}, v{vT0}, 17, v{vT1}")
    a(f"v_lshlrev_b32 v{vT2}, 5, v{vT0}")
    a(f"v_lshlrev_b32 v{vOFF}, 4, v{vLANE}")
    a(f"s_mul_i32 s{sT0}, s{sWAVE}, {tile_bytes}")
    a(f"v_add_u32 v{vOFF}, s{sT0}, v{vOFF}")
    if rot:
        vBASE = a.valloc()
        a(f"v_mov_b32 v{vBASE}, v{vOFF}")
        a(f"s_mul_i32 s{sROT}, s{sWG}, {rot * step}")
        a(f"s_and_b32 s{sROT}, s{sROT}, 0xfffff")
        a(f"s_mov_b32 s{sTI}, 0")
        a(f"v_add_u32 v{vOFF}, s{sROT}, v{vBASE}")

    def advance():
        if rot:
            a(f"s_add_u32 s{sROT}, s{sROT}, {step:#x}")
            a(f"s_and_b32 s{sROT}, s{sROT}, 0xfffff")
            a(f"s_add_u32 s{sTI}, s{sTI}, 1")
            a(f"s_cmp_lt_u32 s{sTI}, {tiles}")
            a(f"s_cselect_b32 s{sRT}, s{sROT}, 0x100000")
            a(f"v_add_u32 v{vOFF}, s{sRT}, v{vBASE}")
        else:
            a(f"v_add_u32 v{vOFF}, {step:#x}, v{vOFF}")
    a(f"s_lshl_b32 s{sT0}, s{sB}, 26")
    a(f"s_lshl_b32 s{sT1}, s{sH}, 21")
    a(f"s_lshl_b32 s{sT2}, s{sHALF}, 20")
    a(f"s_add_u32 s{sT0}, s{sT0}, s{sT1}")
    a(f"s_add_u32 s{sT0}, s{sT0}, s{sT2}")
    a(f"s_lshl_b32 s{sT1}, s{sH}, 8")
    a(f"s_lshl_b32 s{sT2}, s{sB}, 10")
    a(f"s_lshl_b32 s{sT3}, s{sH}, 17")
    for r, nrec in ((sK, 1 << 20), (sV, 1 << 20), (sWQ, 0 if noq else 511 * 8192 + 256), (sWO, 0 if noq else 131072), (sX, 1024), (sY, 32 * BLK)):
        a(f"s_mov_b32 s{r+2}, {nrec:#x}")
        a(f"s_mov_b32 s{r+3}, 0x00020000")
    a("s_waitcnt lgkmcnt(0)")
    a(f"s_add_u32 s{sX}, s{sP}, s{sT2}")
    a(f"s_addc_u32 s{sX+1}, s{sP+1}, 0")
    a(f"s_add_u32 s{sWQ}, s{sP+6}, s{sT1}")
    a(f"s_addc_u32 s{sWQ+1}, s{sP+7}, 0")
    a(f"buffer_load_dwordx4 {vr(vXP,4)}, v{vT2}, {sr(sX,4)}, 0 offen")
    a(f"buffer_load_dwordx4 {vr(vXP+4,4)}, v{vT2}, {sr(sX,4)}, 0 offen offset:16")
    a(f"s_mov_b32 s{sSO}, 0")
    for j in range(16):
        a(f"buffer_load_dwordx4 {vr(vBF+4*j,4)}, v{vT1}, {sr(sWQ,4)}, s{sSO} offen{wf}")
        if j < 15:
            a(f"s_add_u32 s{sSO}, s{sSO}, 0x2000")
    if pbar:
        a("s_barrier")
    a(f"s_add_u32 s{sK}, s{sP+2}, s{sT0}")
    a(f"s_addc_u32 s{sK+1}, s{sP+3}, 0")
    a(f"s_add_u32 s{sV}, s{sP+4}, s{sT0}")
    a(f"s_addc_u32 s{sV+1}, s{sP+5}, 0")

    def issue(srd, base):
        for j in range(n):
            so = "0" if j < 4 else f"s{sOFF4K}"
            assert j < 8
            a(f"buffer_load_dwordx4 {vr(base+4*j,4)}, v{vOFF}, {sr(srd,4)}, {so} offen offset:{(j%4)*1024}{kf}")

    for d in range(D):
        issue(sK, vRK[d])
        issue(sV, vRV[d])
        advance()
    a(f"s_add_u32 s{sWO}, s{sP+8}, s{sT3}")
    a(f"s_addc_u32 s{sWO+1}, s{sP+9}, 0")
    a(f"s_mov_b32 s{sY}, s{sWS}")
    a(f"s_mov_b32 s{sY+1}, s{sWS+1}")
    a(f"v_lshrrev_b32 v{vT0}, 3, v{vLANE}")
    a(f"v_lshlrev_b32 v{vT0}, 10, v{vT0}")
    a(f"v_and_b32 v{vT1}, 7, v{vLANE}")
    a(f"v_lshrrev_b32 v{vT2}, 3, v{vLANE}")
    a(f"v_and_b32 v{vT2}, 2, v{vT2}")
    a(f"v_xor_b32 v{vT1}, v{vT1}, v{vT2}")
    a(f"v_lshl_add_u32 v{vT0}, v{vT1}, 4, v{vT0}")
    a(f"s_lshl_b32 s{sT0}, s{sWAVE}, 7")
    a(f"v_add_u32 v{vT0}, s{sT0}, v{vT0}")
    a(f"v_xor_b32 v{vT1}, 64, v{vT0}")
    a(f"s_lshl_b32 s{sT0}, s{sWAVE}, 14")
    a(f"s_mov_b32 s{sSO}, 0")
    vWOE = a.valloc()
    vWOO = a.valloc()
    a(f"v_mov_b32 v{vWOE}, v{vT0}")
    a(f"v_mov_b32 v{vWOO}, v{vT1}")

    def wo_all():
        for q in range(16):
            a(f"s_mov_b32 m0, s{sT0}")
            a(f"s_add_u32 s{sT0}, s{sT0}, 0x400")
            a(f"buffer_load_dwordx4 v{vWOE if q % 2 == 0 else vWOO}, {sr(sWO,4)}, s{sSO} offen{wf} lds")
            if q < 15:
                a(f"s_add_u32 s{sSO}, s{sSO}, 0x2000")
    if wo == "early":
        wo_all()
    if wo == "spread":
        a(f"s_mov_b32 s{sM0N}, s{sT0}")
    a(f"v_mov_b32 v{vM}, 0xff7fffff")
    a(f"v_mov_b32 v{vL}, 0")
    for i in range(8):
        a(f"v_mov_b32 v{vACC+i}, 0")
    a(f"s_waitcnt vmcnt({2*D*n + (16 if wo == 'early' else 0)})")
    stamp(1)
    if wo == "late":
        wo_all()
    for i in range(8):
        for e in range(4):
            w0 = vBF + 4 * (2 * i) + e
            w1 = vBF + 4 * (2 * i + 1) + e
            a(f"v_perm_b32 v{S(0)+ (2*e)}, v{w1}, v{w0}, s{sSELLO}")
            a(f"v_perm_b32 v{S(0)+ (2*e+1)}, v{w1}, v{w0}, s{sSELHI}")
        for e in range(8):
            a(f"v_dot2c_f32_bf16 v{vACC+e}, v{S(0)+e}, v{vXP+i}")
    a("s_nop 2")

    def rowreduce8(acc, u0, u1):
        a(f"v_permlane32_swap_b32 v{acc+0}, v{acc+4}")
        a(f"v_permlane32_swap_b32 v{acc+2}, v{acc+6}")
        a(f"v_permlane32_swap_b32 v{acc+1}, v{acc+5}")
        a(f"v_permlane32_swap_b32 v{acc+3}, v{acc+7}")
        a(f"v_add_f32 v{acc+0}, v{acc+0}, v{acc+4}")
        a(f"v_add_f32 v{acc+2}, v{acc+2}, v{acc+6}")
        a(f"v_add_f32 v{acc+1}, v{acc+1}, v{acc+5}")
        a(f"v_add_f32 v{acc+3}, v{acc+3}, v{acc+7}")
        a("s_nop 1")
        a(f"v_permlane16_swap_b32 v{acc+0}, v{acc+2}")
        a(f"v_permlane16_swap_b32 v{acc+1}, v{acc+3}")
        a("s_nop 0")
        a(f"v_add_f32 v{u0}, v{acc+0}, v{acc+2}")
        a(f"v_add_f32 v{u1}, v{acc+1}, v{acc+3}")

    rowreduce8(vACC, vU, vU + 1)
    a(f"v_and_b32 v{vT0}, 15, v{vLANE}")
    a(f"v_lshrrev_b32 v{vT1}, 4, v{vLANE}")
    a(f"v_lshlrev_b32 v{vT0}, 5, v{vT0}")
    a(f"v_lshl_add_u32 v{vT0}, v{vT1}, 3, v{vT0}")
    a(f"v_add_u32 v{vT0}, {LDS_QW:#x}, v{vT0}")
    a(f"s_lshl_b32 s{sT0}, s{sWAVE}, 9")
    a(f"v_add_u32 v{vT1}, s{sT0}, v{vT0}")
    a(f"ds_write_b64 v{vT1}, {vr(vU,2)}")
    for i in range(8):
        a(f"v_mov_b32 v{vACC+i}, 0")
    a("s_waitcnt lgkmcnt(0)")
    a("s_barrier")
    for w in range(8):
        a(f"ds_read_b64 {vr(vS+2*w,2)}, v{vT0} offset:{w*512}")
    a("s_waitcnt lgkmcnt(0)")
    for w in range(1, 8):
        a(f"v_add_f32 v{vS}, v{vS}, v{vS+2*w}")
        a(f"v_add_f32 v{vS+1}, v{vS+1}, v{vS+2*w+1}")
    a(f"v_cvt_pk_bf16_f32 v{vQ}, v{vS}, v{vS+1}")
    a("s_nop 0")
    a(f"v_mov_b32 v{vQ+1}, v{vQ}")
    a("s_nop 1")
    a(f"v_permlane16_swap_b32 v{vQ}, v{vQ+1}")
    a("s_nop 0")
    a(f"v_mov_b32 v{vQ+2}, v{vQ}")
    a(f"v_mov_b32 v{vQ+3}, v{vQ+1}")
    a("s_nop 1")
    a(f"v_permlane32_swap_b32 v{vQ}, v{vQ+2}")
    a(f"v_permlane32_swap_b32 v{vQ+1}, v{vQ+3}")
    vA = [a.valloc() for _ in range(4)]
    a(f"v_lshrrev_b32 v{vT0}, 4, v{vLANE}")
    a(f"v_bfe_u32 v{vT1}, v{vLANE}, 2, 2")
    a(f"v_lshl_add_u32 v{vT1}, v{vT0}, 3, v{vT1}")
    a(f"v_lshlrev_b32 v{vT1}, 7, v{vT1}")
    a(f"v_bfe_u32 v{vT2}, v{vLANE}, 3, 2")
    a(f"v_lshl_add_u32 v{vT1}, v{vT2}, 5, v{vT1}")
    a(f"v_and_b32 v{vT2}, 3, v{vLANE}")
    a(f"v_lshl_add_u32 v{vT1}, v{vT2}, 3, v{vT1}")
    a(f"s_lshl_b32 s{sT0}, s{sWAVE}, 14")
    a(f"v_add_u32 v{vA[0]}, s{sT0}, v{vT1}")
    for t in range(1, 4):
        a(f"v_xor_b32 v{vA[t]}, {t<<5}, v{vA[0]}")
    a(f"s_mov_b32 s{sCNT}, 0")
    stamp(2)

    a.lines.append(".p2align 6")
    a.label("L_loop")
    WAIT = (2 * D - 1) * n
    for d in range(D):
        K, V = vRK[d], vRV[d]
        a(f"s_waitcnt vmcnt({WAIT})")
        for kk in range(4):
            for j in range(n):
                if kk == 0:
                    a(f"v_dot2_f32_bf16 v{S(j)}, v{K+4*j}, v{vQ}, 0")
                else:
                    a(f"v_dot2c_f32_bf16 v{S(j)}, v{K+4*j+kk}, v{vQ+kk}")
            if kk == 0 and n < 4:
                a(f"s_nop {3 - n}")
        issue(sK, K)
        if 2 * n - 1 < 3:
            a(f"s_nop {3 - (2 * n - 1) - 1}")
        for st in (8, 4, 2, 1):
            for j in range(n):
                a(f"v_add_f32_dpp v{S(j)}, v{S(j)}, v{S(j)} row_ror:{st} row_mask:0xf bank_mask:0xf")
            if n < 3 and st != 1:
                a(f"s_nop {2 - n}")
        if n == 1:
            a(f"v_max_f32 v{vMN}, v{S(0)}, v{vM}")
        else:
            a(f"v_max3_f32 v{vMN}, v{S(0)}, v{S(1)}, v{vM}")
        for j in range(2, n - 1, 2):
            a(f"v_max3_f32 v{vMN}, v{S(j)}, v{S(j+1)}, v{vMN}")
        if n > 1 and n % 2:
            a(f"v_max_f32 v{vMN}, v{S(n-1)}, v{vMN}")
        a(f"v_mul_f32 v{vNMC}, s{sC}, v{vMN}")
        a(f"v_fma_f32 v{vAL}, v{vM}, s{sC}, -v{vNMC}")
        for j in range(n):
            a(f"v_fma_f32 v{S(j)}, v{S(j)}, s{sC}, -v{vNMC}")
        a(f"v_exp_f32 v{vAL}, v{vAL}")
        for j in range(n):
            a(f"v_exp_f32 v{S(j)}, v{S(j)}")
        a(f"v_mov_b32 v{vM}, v{vMN}")
        if pk:
            for i in range(0, 8, 2):
                a(f"v_pk_mul_f32 {vr(vACC+i,2)}, {vr(vACC+i,2)}, {vr(vAL,2)} op_sel_hi:[1,0]")
        else:
            for i in range(8):
                a(f"v_mul_f32 v{vACC+i}, v{vAL}, v{vACC+i}")
        a(f"v_fma_f32 v{vL}, v{vL}, v{vAL}, v{S(0)}")
        for j in range(1, n):
            a(f"v_add_f32 v{vL}, v{vL}, v{S(j)}")
        if d == 0:
            it_bf = 1 if wo != "spread" else -(-(16 + D) // D)
            a(f"s_cmp_lg_u32 s{sCNT}, {it_bf}")
            a("s_cbranch_scc1 L_nobf")
            for s in range(4):
                for t in range(4):
                    for h in range(2):
                        a(f"ds_read_b64_tr_b16 {vr(vBF+16*s+4*t+2*h,2)}, v{vA[t]} offset:{4096*s+512*h}")
            a.label("L_nobf")
        a(f"s_waitcnt vmcnt({WAIT})")
        for j in range(n):
            for e in range(4):
                a(f"v_lshlrev_b32 v{vU+2*e}, 16, v{V+4*j+e}")
                a(f"v_and_b32 v{vU+2*e+1}, s{sMASK}, v{V+4*j+e}")
            if pk:
                for e in range(4):
                    a(f"v_pk_fma_f32 {vr(vACC+2*e,2)}, {vr(vU+2*e,2)}, {vr(S(j),2)}, {vr(vACC+2*e,2)} op_sel_hi:[1,0,1]")
            else:
                for e in range(8):
                    a(f"v_fmac_f32 v{vACC+e}, v{S(j)}, v{vU+e}")
        issue(sV, V)
        advance()
        if wo == "spread":
            a(f"s_cmp_ge_u32 s{sSO}, 0x20000")
            a(f"s_cbranch_scc1 L_nowo{d}")
            a(f"s_mov_b32 m0, s{sM0N}")
            a(f"s_add_u32 s{sM0N}, s{sM0N}, 0x400")
            a(f"buffer_load_dwordx4 v{vWOE}, {sr(sWO,4)}, s{sSO} offen{wf} lds")
            a(f"s_add_u32 s{sSO}, s{sSO}, 0x2000")
            a(f"v_xor_b32 v{vWOE}, 64, v{vWOE}")
            a.label(f"L_nowo{d}")
    a(f"s_add_u32 s{sCNT}, s{sCNT}, 1")
    a(f"s_cmp_lt_u32 s{sCNT}, {iters}")
    a("s_cbranch_scc1 L_loop")

    stamp(3)
    a(f"v_mul_f32 v{vM}, s{sC}, v{vM}")
    a("s_nop 0")
    a(f"v_mov_b32 v{vT0}, v{vM}")
    a(f"v_mov_b32 v{vT1}, v{vM}")
    a("s_nop 1")
    a(f"v_permlane32_swap_b32 v{vT0}, v{vT1}")
    a("s_nop 0")
    a(f"v_max_f32 v{vT0}, v{vT0}, v{vT1}")
    a("s_nop 0")
    a(f"v_mov_b32 v{vT1}, v{vT0}")
    a("s_nop 1")
    a(f"v_permlane16_swap_b32 v{vT0}, v{vT1}")
    a("s_nop 0")
    a(f"v_max_f32 v{vS}, v{vT0}, v{vT1}")
    a(f"v_sub_f32 v{vAL}, v{vM}, v{vS}")
    a(f"v_exp_f32 v{vAL}, v{vAL}")
    a("s_nop 0")
    a(f"v_mul_f32 v{vT0}, v{vAL}, v{vL}")
    for i in range(8):
        a(f"v_mul_f32 v{vACC+i}, v{vAL}, v{vACC+i}")
    a(f"v_mov_b32 v{vT1}, v{vT0}")
    a("s_nop 1")
    a(f"v_permlane32_swap_b32 v{vT0}, v{vT1}")
    rowreduce8(vACC, vU, vU + 1)
    a(f"v_add_f32 v{vT0}, v{vT0}, v{vT1}")
    a(f"v_cvt_pk_bf16_f32 v{vU+2}, v{vU}, v{vU+1}")
    a(f"v_mov_b32 v{vT1}, v{vT0}")
    a(f"v_lshlrev_b32 v{vU+4}, 16, v{vU+2}")
    a(f"v_and_b32 v{vU+5}, s{sMASK}, v{vU+2}")
    a(f"v_permlane16_swap_b32 v{vT0}, v{vT1}")
    a(f"v_sub_f32 v{vU+4}, v{vU}, v{vU+4}")
    a(f"v_sub_f32 v{vU+5}, v{vU+1}, v{vU+5}")
    a(f"v_add_f32 v{vS+1}, v{vT0}, v{vT1}")
    a(f"v_cvt_pk_bf16_f32 v{vU+3}, v{vU+4}, v{vU+5}")
    a(f"v_and_b32 v{vT0}, 15, v{vLANE}")
    a(f"v_lshrrev_b32 v{vT1}, 4, v{vLANE}")
    a(f"v_lshlrev_b32 v{vT2}, 4, v{vT0}")
    a(f"v_lshl_add_u32 v{vT2}, v{vT1}, 2, v{vT2}")
    a(f"s_mul_i32 s{sT0}, s{sWAVE}, {OA_STRIDE}")
    a(f"s_add_u32 s{sT0}, s{sT0}, {LDS_OA:#x}")
    a(f"v_add_u32 v{vT2}, s{sT0}, v{vT2}")
    a(f"ds_write_b32 v{vT2}, v{vU+2}")
    a(f"ds_write_b32 v{vT2}, v{vU+3} offset:{8*OA_STRIDE}")
    a(f"s_lshl_b32 s{sT0}, s{sWAVE}, 3")
    a(f"s_add_u32 s{sT0}, s{sT0}, {LDS_ML:#x}")
    a(f"v_mov_b32 v{vT2}, s{sT0}")
    a("s_mov_b64 exec, 1")
    a(f"ds_write_b64 v{vT2}, {vr(vS,2)}")
    a("s_mov_b64 exec, -1")
    a(f"v_mul_u32_u24 v{vT0}, {OA_STRIDE}, v{vT0}")
    a(f"v_lshl_add_u32 v{vT0}, v{vT1}, 4, v{vT0}")
    a(f"v_add_u32 v{vT0}, {LDS_OA:#x}, v{vT0}")
    a(f"v_and_b32 v{vT1}, 1, v{vT1}")
    a(f"v_lshlrev_b32 v{vT1}, 5, v{vT1}")
    a(f"v_add_u32 v{vT1}, {LDS_ML:#x}, v{vT1}")
    a(f"v_xor_b32 v{vT2}, 32, v{vT1}")
    a(f"s_lshl_b32 s{sT0}, s{sPROB}, 1")
    a(f"s_add_u32 s{sT0}, s{sT0}, s{sB}")
    a(f"s_lshl_b32 s{sT0}, s{sT0}, 3")
    a(f"s_add_u32 s{sT0}, s{sT0}, s{sWAVE}")
    a(f"s_mul_i32 s{sYOFF}, s{sT0}, {BLK}")
    a(f"s_lshl_b32 s{sT1}, s{sH}, 1")
    a(f"s_add_u32 s{sT1}, s{sT1}, s{sHALF}")
    a(f"s_and_b32 s{sT2}, s{sT1}, 15")
    a(f"s_lshl_b32 s{sT2}, s{sT2}, 2")
    a(f"s_lshr_b32 s{sT3}, s{sT1}, 4")
    a(f"s_add_u32 s{sT2}, s{sT2}, s{sT3}")
    a(f"s_lshl_b32 s{sT2}, s{sT2}, 8")
    a(f"s_add_u32 s{sT2}, s{sT2}, s{sYOFF}")
    a(f"s_lshl_b32 s{sT1}, s{sT1}, 3")
    a(f"s_add_u32 s{sT1}, s{sT1}, s{sYOFF}")
    a(f"s_add_u32 s{sT1}, s{sT1}, 0x4000")
    a("s_waitcnt vmcnt(0) lgkmcnt(0)")
    a("s_barrier")
    if 8 * n * D >= 56:
        vE = vRK[0]
    else:
        vE = a.valloc(56, 4)
    vAF = vE
    vML = vE + 16
    vD = vE + 32
    vSC = vE + 48
    for s in range(4):
        a(f"ds_read_b128 {vr(vAF+4*s,4)}, v{vT0} offset:{64*s}")
    a(f"ds_read_b128 {vr(vML,4)}, v{vT1}")
    a(f"ds_read_b128 {vr(vML+4,4)}, v{vT1} offset:16")
    a(f"ds_read_b128 {vr(vML+8,4)}, v{vT2}")
    a(f"ds_read_b128 {vr(vML+12,4)}, v{vT2} offset:16")
    for s in range(4):
        a(f"s_waitcnt lgkmcnt({7-s})")
        for t in range(4):
            c = "0" if s == 0 else vr(vD + 4 * t, 4)
            a(f"v_mfma_f32_16x16x32_bf16 {vr(vD+4*t,4)}, {vr(vAF+4*s,4)}, {vr(vBF+16*s+4*t,4)}, {c}")
    a("s_waitcnt lgkmcnt(0)")
    a(f"v_max3_f32 v{vMN}, v{vML}, v{vML+2}, v{vML+4}")
    a(f"v_max3_f32 v{vMN}, v{vML+6}, v{vML+8}, v{vMN}")
    a(f"v_max3_f32 v{vMN}, v{vML+10}, v{vML+12}, v{vMN}")
    a(f"v_max_f32 v{vS}, v{vML+14}, v{vMN}")
    for r in range(8):
        a(f"v_sub_f32 v{vSC+r}, v{vML+2*r}, v{vS}")
    for r in range(8):
        a(f"v_exp_f32 v{vSC+r}, v{vSC+r}")
    a(f"v_mul_f32 v{vS+1}, v{vSC}, v{vML+1}")
    for r in range(1, 8):
        a(f"v_fmac_f32 v{vS+1}, v{vSC+r}, v{vML+2*r+1}")
    a(f"v_lshlrev_b32 v{vT0}, 2, v{vLANE}")
    for t in range(4):
        a(f"v_mul_f32 v{vU+t}, v{vSC}, v{vD+4*t}")
    for r in range(1, 4):
        for t in range(4):
            a(f"v_fmac_f32 v{vU+t}, v{vSC+r}, v{vD+4*t+r}")
    a("s_nop 0")
    a(f"v_permlane32_swap_b32 v{vU}, v{vU+2}")
    a(f"v_permlane32_swap_b32 v{vU+1}, v{vU+3}")
    a("s_nop 0")
    a(f"v_add_f32 v{vU}, v{vU}, v{vU+2}")
    a(f"v_add_f32 v{vU+1}, v{vU+1}, v{vU+3}")
    a("s_nop 1")
    a(f"v_permlane16_swap_b32 v{vU}, v{vU+1}")
    a("s_nop 0")
    a(f"v_add_f32 v{vU}, v{vU}, v{vU+1}")
    a(f"buffer_store_dword v{vU}, v{vT0}, {sr(sY,4)}, s{sT2} offen")
    a("s_mov_b64 exec, 1")
    a(f"buffer_store_dwordx2 {vr(vS,2)}, v{vT0}, {sr(sY,4)}, s{sT1} offen")
    if diag:
        a("s_waitcnt vmcnt(0)")
        stamp(4)
        a(f"s_add_u32 s68, s{sWS}, 0x400000")
        a(f"s_addc_u32 s69, s{sWS+1}, 0")
        a("s_mov_b32 s70, 0x100000")
        a("s_mov_b32 s71, 0x00020000")
        a(f"s_lshl_b32 s{sT0}, s{sWG}, 3")
        a(f"s_add_u32 s{sT0}, s{sT0}, s{sWAVE}")
        a(f"s_lshl_b32 s{sT0}, s{sT0}, 5")
        a(f"s_getreg_b32 s{sT1}, hwreg(HW_REG_XCC_ID)")
        a(f"s_getreg_b32 s{sT2}, hwreg(HW_REG_HW_ID)")
        a("s_waitcnt lgkmcnt(0)")
        for i in range(5):
            a(f"v_mov_b32 v{vACC+i}, s{sST+2*i}")
        a(f"v_mov_b32 v{vACC+5}, s{sT1}")
        a(f"v_mov_b32 v{vACC+6}, s{sT2}")
        a(f"v_mov_b32 v{vACC+7}, 0")
        a(f"buffer_store_dwordx4 {vr(vACC,4)}, v{vT0}, s[68:71], s{sT0} offen")
        a(f"buffer_store_dwordx4 {vr(vACC+4,4)}, v{vT0}, s[68:71], s{sT0} offen offset:16")
    a.label("L_attn_end")
    a("s_endpgm")
    return a, NSGPR


def gen_reduce(diag=False):
    a = Asm()
    a.valloc(1)
    vOFF = a.valloc()
    vT0 = a.valloc()
    vT1 = a.valloc()
    vW = a.valloc()
    vML = a.valloc(4, 4)
    vACC = a.valloc(4, 4)
    vY = a.valloc(64, 4)
    a.label("reduce_kernel")
    a("s_cmp_ge_u32 s2, 32")
    a("s_cbranch_scc1 L_red_end")
    if diag:
        a("s_memrealtime s[24:25]")
    a("s_load_dwordx2 s[4:5], s[0:1], 80")
    a("s_load_dwordx2 s[6:7], s[0:1], 96")
    a(f"s_mul_i32 s3, s2, {BLK}")
    a(f"v_lshlrev_b32 v{vOFF}, 4, v0")
    a(f"v_lshrrev_b32 v{vT0}, 1, v0")
    a(f"v_lshlrev_b32 v{vT0}, 4, v{vT0}")
    a(f"s_mov_b32 s10, {BLK}")
    a("s_mov_b32 s11, 0x00020000")
    a("s_mov_b32 s14, 4096")
    a("s_mov_b32 s15, 0x00020000")
    a("s_movk_i32 s16, 0x1000")
    a("s_movk_i32 s17, 0x2000")
    a("s_movk_i32 s18, 0x3000")
    a("s_movk_i32 s19, 0x4000")
    a("s_waitcnt lgkmcnt(0)")
    a("s_add_u32 s8, s6, s3")
    a("s_addc_u32 s9, s7, 0")
    a(f"buffer_load_dwordx4 {vr(vML,4)}, v{vT0}, s[8:11], s19 offen")
    for i in range(16):
        so = "0" if i < 4 else f"s{15 + i // 4}"
        a(f"buffer_load_dwordx4 {vr(vY+4*i,4)}, v{vOFF}, s[8:11], {so} offen offset:{(i%4)*1024}")
    a("s_mov_b32 s12, s4")
    a("s_mov_b32 s13, s5")
    a("s_bfe_u32 s20, s2, 0x10003")
    a("s_lshl_b32 s20, s20, 11")
    a("s_lshr_b32 s21, s2, 4")
    a("s_lshl_b32 s21, s21, 10")
    a("s_add_u32 s20, s20, s21")
    a("s_and_b32 s21, s2, 7")
    a("s_lshl_b32 s21, s21, 7")
    a("s_add_u32 s20, s20, s21")
    a(f"v_and_b32 v{vT0}, 15, v0")
    a(f"v_lshrrev_b32 v{vT1}, 4, v0")
    a(f"v_lshl_add_u32 v{vOFF}, v{vT0}, 2, v{vT1}")
    a(f"v_lshlrev_b32 v{vOFF}, 1, v{vOFF}")
    a(f"v_and_b32 v{vT0}, 1, v0")
    a(f"v_cmp_eq_u32 vcc, 1, v{vT0}")
    a("s_waitcnt vmcnt(16)")
    a(f"v_max_f32 v{vT0}, v{vML}, v{vML+2}")
    a(f"v_sub_f32 v{vML}, v{vML}, v{vT0}")
    a(f"v_sub_f32 v{vML+2}, v{vML+2}, v{vT0}")
    a(f"v_exp_f32 v{vML}, v{vML}")
    a(f"v_exp_f32 v{vML+2}, v{vML+2}")
    a("s_nop 0")
    a(f"v_mul_f32 v{vT0}, v{vML}, v{vML+1}")
    a(f"v_fmac_f32 v{vT0}, v{vML+2}, v{vML+3}")
    a(f"v_rcp_f32 v{vT0}, v{vT0}")
    a(f"v_cndmask_b32 v{vW}, v{vML}, v{vML+2}, vcc")
    a(f"v_mul_f32 v{vW}, v{vW}, v{vT0}")
    for e in range(4):
        a(f"v_mov_b32 v{vACC+e}, 0")
    for i in range(16):
        a(f"s_waitcnt vmcnt({15-i})")
        for e in range(4):
            a(f"v_fmac_f32_dpp v{vACC+e}, v{vW}, v{vY+4*i+e} row_newbcast:{i} row_mask:0xf bank_mask:0xf")
    a("s_nop 1")
    a(f"v_permlane32_swap_b32 v{vACC}, v{vACC+2}")
    a(f"v_permlane32_swap_b32 v{vACC+1}, v{vACC+3}")
    a("s_nop 0")
    a(f"v_add_f32 v{vACC}, v{vACC}, v{vACC+2}")
    a(f"v_add_f32 v{vACC+1}, v{vACC+1}, v{vACC+3}")
    a("s_nop 1")
    a(f"v_permlane16_swap_b32 v{vACC}, v{vACC+1}")
    a("s_nop 0")
    a(f"v_add_f32 v{vACC}, v{vACC}, v{vACC+1}")
    a(f"v_cvt_pk_bf16_f32 v{vACC}, v{vACC}, v{vACC}")
    a(f"buffer_store_short v{vACC}, v{vOFF}, s[12:15], s20 offen")
    if diag:
        a("s_waitcnt vmcnt(0)")
        a("s_memrealtime s[26:27]")
        a("s_add_u32 s28, s6, 0x410000")
        a("s_addc_u32 s29, s7, 0")
        a("s_mov_b32 s30, 0x100000")
        a("s_mov_b32 s31, 0x00020000")
        a("s_lshl_b32 s3, s2, 3")
        a("s_waitcnt lgkmcnt(0)")
        a(f"v_mov_b32 v{vACC}, s24")
        a(f"v_mov_b32 v{vACC+1}, s26")
        a(f"v_mov_b32 v{vT0}, 0")
        a("s_mov_b64 exec, 1")
        a(f"buffer_store_dwordx2 {vr(vACC,2)}, v{vT0}, s[28:31], s3 offen")
    a.label("L_red_end")
    a("s_endpgm")
    return a, 32 if diag else 24


def kd(name, a, nsgpr):
    nv = a.maxv
    return f""".amdhsa_kernel {name}
  .amdhsa_next_free_vgpr {nv}
  .amdhsa_next_free_sgpr {nsgpr}
  .amdhsa_accum_offset {(nv + 3) // 4 * 4}
  .amdhsa_group_segment_fixed_size 0
  .amdhsa_kernarg_size 104
  .amdhsa_user_sgpr_count 2
  .amdhsa_user_sgpr_kernarg_segment_ptr 1
  .amdhsa_system_sgpr_workgroup_id_x 1
.end_amdhsa_kernel
"""


def build(**kw):
    a1, s1 = gen_attn(**kw)
    a2, s2 = gen_reduce(kw.get("diag", False))
    k1 = NAME + "_kernel"
    out = HEADER
    out += f"; @launch kernel={k1} grid=(256,1,1) block=(512,1,1) lds={LDS_TOTAL}\n"
    out += "; @launch kernel=reduce_kernel grid=(32,1,1) block=(64,1,1) lds=0\n"
    out += '.amdgcn_target "amdgcn-amd-amdhsa--gfx950"\n.text\n'
    out += f".globl {k1}\n.p2align 8\n.type {k1},@function\n" + a1.text()
    out += ".globl reduce_kernel\n.p2align 8\n.type reduce_kernel,@function\n" + a2.text()
    out += '.section .rodata,"a"\n.p2align 6\n' + kd(k1, a1, s1) + ".p2align 6\n" + kd("reduce_kernel", a2, s2)
    return out


if __name__ == "__main__":
    import argparse
    ap = argparse.ArgumentParser()
    ap.add_argument("-o", default=f"cdna_kernels/{NAME}.s")
    ap.add_argument("--n", type=int, default=8)
    ap.add_argument("--D", type=int, default=2)
    ap.add_argument("--kv", default="nt")
    ap.add_argument("--wf", default="")
    ap.add_argument("--nopk", action="store_true")
    ap.add_argument("--diag", action="store_true")
    ap.add_argument("--wo", default="late")
    ap.add_argument("--pbar", action="store_true")
    ap.add_argument("--map", default="xcd")
    ap.add_argument("--noq", action="store_true")
    ap.add_argument("--rot", type=int, default=0)
    args = ap.parse_args()
    open(args.o, "w").write(build(n=args.n, D=args.D, kvflags=args.kv, wflags=args.wf, pk=not args.nopk, diag=args.diag, wo=args.wo, pbar=args.pbar, wmap=args.map, noq=args.noq, rot=args.rot))
```

```python
import sys, struct, math
from gen import HEADER, NAME, Asm, vr, sr, f32bits, kd, gen_reduce, BLK

LDS_WO = 0
LDS_QW = 131072
LDS_OA = 135168
OA_STRIDE = 272
LDS_ML = LDS_OA + 16 * OA_STRIDE
LDS_TOTAL = LDS_ML + 64


def lcm(a, b):
    return a * b // math.gcd(a, b)


def gen_attn(n=2, F=2, early=False, kvflags="nt", wflags="nt", diag=False, wo="early", wmap="xcd2", noq=False,
             rot=0, F0=0):
    W = 8
    a = Asm()
    C = (128.0 ** -0.5) * math.log2(math.e)
    tile_bytes = n * 1024
    step = W * tile_bytes
    tiles = (1 << 20) // step
    R = F + 1 if early else F
    U = lcm(2, R)
    kf = (" " + kvflags) if kvflags else ""
    wf = (" " + wflags) if wflags else ""

    sWG, sWAVE = 2, 3
    sP = 4
    sWS = 14
    sK, sV, sWQ, sWO, sX, sY = 16, 20, 24, 28, 32, 36
    sT0, sT1, sT2, sT3 = 40, 41, 42, 43
    sC, sMASK, sSELLO, sSELHI, sCNT, sOFF4K = 44, 45, 46, 47, 48, 49
    sH, sB, sHALF, sPROB = 50, 51, 52, 53
    sSO, sYOFF, sM0N = 54, 55, 56
    sRK, sRV, sIK, sIV, sRT = 57, 58, 59, 60, 61
    NSGPR = 62
    sST = 64
    if diag:
        NSGPR = 80

    def stamp(i):
        if diag:
            a(f"s_memrealtime {sr(sST+2*i,2)}")

    a.valloc(1)
    vLANE = a.valloc()
    vOK = a.valloc()
    vOV = a.valloc()
    vBASE = a.valloc()
    vT0 = a.valloc()
    vT1 = a.valloc()
    vT2 = a.valloc()
    vM = a.valloc()
    vL = a.valloc()
    vNMC = a.valloc()
    vMN = a.valloc()
    vWOE = a.valloc()
    vWOO = a.valloc()
    vA = [a.valloc() for _ in range(4)]
    vAL = a.valloc(2, 2)
    vQ = a.valloc(4, 4)
    vACC = a.valloc(8, 4)
    vS = a.valloc(max(2 * n, 16), 2)
    vU = a.valloc(8, 4)
    vBF = a.valloc(64, 4)
    vRING = a.valloc(max(4 * n * R, 56), 4)
    slot = lambda j: vRING + 4 * n * (j % R)
    vXP = vU
    S = lambda j: vS + 2 * j

    k = NAME + "_kernel"
    a.label(k)
    a(f"s_cmp_ge_u32 s{sWG}, 256")
    a("s_cbranch_scc1 L_attn_end")
    stamp(0)
    maps = {"xcd": "p34567012", "xcd2": "p34012567", "lin": "p06123457"}
    wm = maps.get(wmap, wmap)
    bits = [int(c) for c in wm[1:]]
    assert sorted(bits) == list(range(8))
    a(f"s_bfe_u32 s{sPROB}, s{sWG}, {0x10000 | bits[7]:#x}")
    a(f"s_mul_i32 s{sT2}, s{sPROB}, 40")
    a(f"s_load_dwordx8 {sr(sP, 8)}, s[0:1], s{sT2}")
    a(f"s_load_dwordx2 {sr(sP + 8, 2)}, s[0:1], s{sT2} offset:32")
    a(f"s_load_dwordx2 {sr(sWS, 2)}, s[0:1], 96")
    a(f"s_bfe_u32 s{sHALF}, s{sWG}, {0x10000 | bits[0]:#x}")
    a(f"s_bfe_u32 s{sB}, s{sWG}, {0x10000 | bits[1]:#x}")
    a(f"s_mov_b32 s{sH}, 0")
    i = 0
    while i < 5:
        j = i
        while j + 1 < 5 and bits[2 + j + 1] == bits[2 + j] + 1:
            j += 1
        a(f"s_bfe_u32 s{sT3}, s{sWG}, {((j - i + 1) << 16) | bits[2 + i]:#x}")
        if i:
            a(f"s_lshl_b32 s{sT3}, s{sT3}, {i}")
        a(f"s_or_b32 s{sH}, s{sH}, s{sT3}")
        i = j + 1
    a(f"v_lshrrev_b32 v{vT0}, 6, v0")
    a(f"v_and_b32 v{vLANE}, 63, v0")
    a(f"v_readfirstlane_b32 s{sWAVE}, v{vT0}")
    a(f"s_mov_b32 s{sC}, {f32bits(C):#x}")
    a(f"s_mov_b32 s{sMASK}, 0xffff0000")
    a(f"s_mov_b32 s{sSELLO}, 0x05040100")
    a(f"s_mov_b32 s{sSELHI}, 0x07060302")
    a(f"s_movk_i32 s{sOFF4K}, 0x1000")
    a(f"v_lshrrev_b32 v{vT0}, 4, v0")
    a(f"v_and_b32 v{vT1}, 15, v0")
    a(f"v_lshlrev_b32 v{vT1}, 4, v{vT1}")
    a(f"v_lshl_add_u32 v{vT1}, v{vT0}, 17, v{vT1}")
    a(f"v_lshlrev_b32 v{vT2}, 5, v{vT0}")
    a(f"v_lshlrev_b32 v{vBASE}, 4, v{vLANE}")
    a(f"s_mul_i32 s{sT0}, s{sWAVE}, {tile_bytes}")
    a(f"v_add_u32 v{vBASE}, s{sT0}, v{vBASE}")
    if rot:
        a(f"s_mul_i32 s{sRK}, s{sWG}, {rot * step}")
        a(f"s_and_b32 s{sRK}, s{sRK}, 0xfffff")
        a(f"s_mov_b32 s{sRV}, s{sRK}")
        a(f"s_mov_b32 s{sIK}, 0")
        a(f"s_mov_b32 s{sIV}, 0")
        a(f"v_add_u32 v{vOK}, s{sRK}, v{vBASE}")
        a(f"v_add_u32 v{vOV}, s{sRK}, v{vBASE}")
    else:
        a(f"v_mov_b32 v{vOK}, v{vBASE}")
        a(f"v_mov_b32 v{vOV}, v{vBASE}")
    a(f"s_lshl_b32 s{sT0}, s{sB}, 26")
    a(f"s_lshl_b32 s{sT1}, s{sH}, 21")
    a(f"s_lshl_b32 s{sT2}, s{sHALF}, 20")
    a(f"s_add_u32 s{sT0}, s{sT0}, s{sT1}")
    a(f"s_add_u32 s{sT0}, s{sT0}, s{sT2}")
    a(f"s_lshl_b32 s{sT1}, s{sH}, 8")
    a(f"s_lshl_b32 s{sT2}, s{sB}, 10")
    a(f"s_lshl_b32 s{sT3}, s{sH}, 17")
    for r, nrec in ((sK, 1 << 20), (sV, 1 << 20), (sWQ, 0 if noq else 511 * 8192 + 256), (sWO, 0 if noq else 131072),
                    (sX, 1024), (sY, 32 * BLK)):
        a(f"s_mov_b32 s{r+2}, {nrec:#x}")
        a(f"s_mov_b32 s{r+3}, 0x00020000")
    a("s_waitcnt lgkmcnt(0)")
    stamp(1)
    a(f"s_add_u32 s{sX}, s{sP}, s{sT2}")
    a(f"s_addc_u32 s{sX+1}, s{sP+1}, 0")
    a(f"s_add_u32 s{sWQ}, s{sP+6}, s{sT1}")
    a(f"s_addc_u32 s{sWQ+1}, s{sP+7}, 0")
    a(f"buffer_load_dwordx4 {vr(vXP,4)}, v{vT2}, {sr(sX,4)}, 0 offen")
    a(f"buffer_load_dwordx4 {vr(vXP+4,4)}, v{vT2}, {sr(sX,4)}, 0 offen offset:16")
    a(f"s_mov_b32 s{sSO}, 0")
    for j in range(16):
        a(f"buffer_load_dwordx4 {vr(vBF+4*j,4)}, v{vT1}, {sr(sWQ,4)}, s{sSO} offen{wf}")
        if j < 15:
            a(f"s_add_u32 s{sSO}, s{sSO}, 0x2000")
    a(f"s_add_u32 s{sK}, s{sP+2}, s{sT0}")
    a(f"s_addc_u32 s{sK+1}, s{sP+3}, 0")
    a(f"s_add_u32 s{sV}, s{sP+4}, s{sT0}")
    a(f"s_addc_u32 s{sV+1}, s{sP+5}, 0")

    def issue(item):
        isv = item & 1
        srd, vo = (sV, vOV) if isv else (sK, vOK)
        base = slot(item)
        for j in range(n):
            so = "0" if j < 4 else f"s{sOFF4K}"
            assert j < 8
            a(f"buffer_load_dwordx4 {vr(base+4*j,4)}, v{vo}, {sr(srd,4)}, {so} offen offset:{(j%4)*1024}{kf}")
        if rot:
            sR, sI = (sRV, sIV) if isv else (sRK, sIK)
            a(f"s_add_u32 s{sR}, s{sR}, {step:#x}")
            a(f"s_and_b32 s{sR}, s{sR}, 0xfffff")
            a(f"s_add_u32 s{sI}, s{sI}, 1")
            a(f"s_cmp_lt_u32 s{sI}, {tiles}")
            a(f"s_cselect_b32 s{sRT}, s{sR}, 0x100000")
            a(f"v_add_u32 v{vo}, s{sRT}, v{vBASE}")
        else:
            a(f"v_add_u32 v{vo}, {step:#x}, v{vo}")

    for it in range(F):
        issue(it)
    a(f"s_add_u32 s{sWO}, s{sP+8}, s{sT3}")
    a(f"s_addc_u32 s{sWO+1}, s{sP+9}, 0")
    a(f"s_mov_b32 s{sY}, s{sWS}")
    a(f"s_mov_b32 s{sY+1}, s{sWS+1}")
    a(f"v_lshrrev_b32 v{vT0}, 3, v{vLANE}")
    a(f"v_lshlrev_b32 v{vT0}, 10, v{vT0}")
    a(f"v_and_b32 v{vT1}, 7, v{vLANE}")
    a(f"v_lshrrev_b32 v{vT2}, 3, v{vLANE}")
    a(f"v_and_b32 v{vT2}, 2, v{vT2}")
    a(f"v_xor_b32 v{vT1}, v{vT1}, v{vT2}")
    a(f"v_lshl_add_u32 v{vT0}, v{vT1}, 4, v{vT0}")
    a(f"s_lshl_b32 s{sT0}, s{sWAVE}, 7")
    a(f"v_add_u32 v{vWOE}, s{sT0}, v{vT0}")
    a(f"v_xor_b32 v{vWOO}, 64, v{vWOE}")
    a(f"s_lshl_b32 s{sM0N}, s{sWAVE}, 14")
    a(f"s_mov_b32 s{sSO}, 0")

    def wo_all():
        for q in range(16):
            a(f"s_mov_b32 m0, s{sM0N}")
            a(f"s_add_u32 s{sM0N}, s{sM0N}, 0x400")
            a(f"buffer_load_dwordx4 v{vWOE if q % 2 == 0 else vWOO}, {sr(sWO,4)}, s{sSO} offen{wf} lds")
            if q < 15:
                a(f"s_add_u32 s{sSO}, s{sSO}, 0x2000")
    if wo == "early":
        wo_all()
    a(f"v_mov_b32 v{vM}, 0xff7fffff")
    a(f"v_mov_b32 v{vL}, 0")
    for i in range(8):
        a(f"v_mov_b32 v{vACC+i}, 0")
    a(f"s_waitcnt vmcnt({F*n + (16 if wo == 'early' else 0)})")
    stamp(2)
    if wo == "late":
        wo_all()
    for i in range(8):
        for e in range(4):
            w0 = vBF + 4 * (2 * i) + e
            w1 = vBF + 4 * (2 * i + 1) + e
            a(f"v_perm_b32 v{vS + 2*e}, v{w1}, v{w0}, s{sSELLO}")
            a(f"v_perm_b32 v{vS + 2*e+1}, v{w1}, v{w0}, s{sSELHI}")
        for e in range(8):
            a(f"v_dot2c_f32_bf16 v{vACC+e}, v{vS+e}, v{vXP+i}")
    a("s_nop 2")

    def rowreduce8(acc, u0, u1):
        a(f"v_permlane32_swap_b32 v{acc+0}, v{acc+4}")
        a(f"v_permlane32_swap_b32 v{acc+2}, v{acc+6}")
        a(f"v_permlane32_swap_b32 v{acc+1}, v{acc+5}")
        a(f"v_permlane32_swap_b32 v{acc+3}, v{acc+7}")
        a(f"v_add_f32 v{acc+0}, v{acc+0}, v{acc+4}")
        a(f"v_add_f32 v{acc+2}, v{acc+2}, v{acc+6}")
        a(f"v_add_f32 v{acc+1}, v{acc+1}, v{acc+5}")
        a(f"v_add_f32 v{acc+3}, v{acc+3}, v{acc+7}")
        a("s_nop 1")
        a(f"v_permlane16_swap_b32 v{acc+0}, v{acc+2}")
        a(f"v_permlane16_swap_b32 v{acc+1}, v{acc+3}")
        a("s_nop 0")
        a(f"v_add_f32 v{u0}, v{acc+0}, v{acc+2}")
        a(f"v_add_f32 v{u1}, v{acc+1}, v{acc+3}")

    rowreduce8(vACC, vU, vU + 1)
    a(f"v_and_b32 v{vT0}, 15, v{vLANE}")
    a(f"v_lshrrev_b32 v{vT1}, 4, v{vLANE}")
    a(f"v_lshlrev_b32 v{vT0}, 5, v{vT0}")
    a(f"v_lshl_add_u32 v{vT0}, v{vT1}, 3, v{vT0}")
    a(f"v_add_u32 v{vT0}, {LDS_QW:#x}, v{vT0}")
    a(f"s_lshl_b32 s{sT0}, s{sWAVE}, 9")
    a(f"v_add_u32 v{vT1}, s{sT0}, v{vT0}")
    a(f"ds_write_b64 v{vT1}, {vr(vU,2)}")
    for i in range(8):
        a(f"v_mov_b32 v{vACC+i}, 0")
    a(f"v_lshrrev_b32 v{vA[1]}, 4, v{vLANE}")
    a(f"v_bfe_u32 v{vT1}, v{vLANE}, 2, 2")
    a(f"v_lshl_add_u32 v{vT1}, v{vA[1]}, 3, v{vT1}")
    a(f"v_lshlrev_b32 v{vT1}, 7, v{vT1}")
    a(f"v_bfe_u32 v{vT2}, v{vLANE}, 3, 2")
    a(f"v_lshl_add_u32 v{vT1}, v{vT2}, 5, v{vT1}")
    a(f"v_and_b32 v{vT2}, 3, v{vLANE}")
    a(f"v_lshl_add_u32 v{vT1}, v{vT2}, 3, v{vT1}")
    a(f"s_lshl_b32 s{sT0}, s{sWAVE}, 14")
    a(f"v_add_u32 v{vA[0]}, s{sT0}, v{vT1}")
    for t in range(1, 4):
        a(f"v_xor_b32 v{vA[t]}, {t<<5}, v{vA[0]}")
    a(f"s_mov_b32 s{sCNT}, 0")
    a("s_waitcnt lgkmcnt(0)")
    a("s_barrier")
    for w in range(8):
        a(f"ds_read_b64 {vr(vS+2*w,2)}, v{vT0} offset:{w*512}")
    a("s_waitcnt lgkmcnt(0)")
    for w in range(1, 8):
        a(f"v_add_f32 v{vS}, v{vS}, v{vS+2*w}")
        a(f"v_add_f32 v{vS+1}, v{vS+1}, v{vS+2*w+1}")
    a(f"v_cvt_pk_bf16_f32 v{vQ}, v{vS}, v{vS+1}")
    a("s_nop 0")
    a(f"v_mov_b32 v{vQ+1}, v{vQ}")
    a("s_nop 1")
    a(f"v_permlane16_swap_b32 v{vQ}, v{vQ+1}")
    a("s_nop 0")
    a(f"v_mov_b32 v{vQ+2}, v{vQ}")
    a(f"v_mov_b32 v{vQ+3}, v{vQ+1}")
    a("s_nop 1")
    a(f"v_permlane32_swap_b32 v{vQ}, v{vQ+2}")
    a(f"v_permlane32_swap_b32 v{vQ+1}, v{vQ+3}")
    stamp(3)

    a.lines.append(".p2align 6")
    a.label("L_loop")
    WAIT = (F - 1) * n
    t_bf = (F + 1) // 2 + 1 if wo != "spread" else 16 + (F + 1) // 2 + 1
    for it in range(U):
        R0 = slot(it)
        a(f"s_waitcnt vmcnt({WAIT})")
        if early:
            issue(it + F)
        if it % 2 == 0:
            for kk in range(4):
                for j in range(n):
                    if kk == 0:
                        a(f"v_dot2_f32_bf16 v{S(j)}, v{R0+4*j}, v{vQ}, 0")
                    else:
                        a(f"v_dot2c_f32_bf16 v{S(j)}, v{R0+4*j+kk}, v{vQ+kk}")
                if kk == 0 and n < 4:
                    a(f"s_nop {3 - n}")
            if not early:
                issue(it + F)
                gap = 2 * n
            else:
                gap = n - 1
            if gap < 3:
                a(f"s_nop {3 - gap - 1}")
            for st in (8, 4, 2, 1):
                for j in range(n):
                    a(f"v_add_f32_dpp v{S(j)}, v{S(j)}, v{S(j)} row_ror:{st} row_mask:0xf bank_mask:0xf")
                if n < 3 and st != 1:
                    a(f"s_nop {2 - n}")
            if n == 1:
                a(f"v_max_f32 v{vMN}, v{S(0)}, v{vM}")
            else:
                a(f"v_max3_f32 v{vMN}, v{S(0)}, v{S(1)}, v{vM}")
            for j in range(2, n - 1, 2):
                a(f"v_max3_f32 v{vMN}, v{S(j)}, v{S(j+1)}, v{vMN}")
            if n > 1 and n % 2:
                a(f"v_max_f32 v{vMN}, v{S(n-1)}, v{vMN}")
            a(f"v_mul_f32 v{vNMC}, s{sC}, v{vMN}")
            a(f"v_fma_f32 v{vAL}, v{vM}, s{sC}, -v{vNMC}")
            for j in range(n):
                a(f"v_fma_f32 v{S(j)}, v{S(j)}, s{sC}, -v{vNMC}")
            a(f"v_exp_f32 v{vAL}, v{vAL}")
            for j in range(n):
                a(f"v_exp_f32 v{S(j)}, v{S(j)}")
            a(f"v_mov_b32 v{vM}, v{vMN}")
            for i in range(0, 8, 2):
                a(f"v_pk_mul_f32 {vr(vACC+i,2)}, {vr(vACC+i,2)}, {vr(vAL,2)} op_sel_hi:[1,0]")
            a(f"v_fma_f32 v{vL}, v{vL}, v{vAL}, v{S(0)}")
            for j in range(1, n):
                a(f"v_add_f32 v{vL}, v{vL}, v{S(j)}")
            if it == 0:
                tb = -(-t_bf // (U // 2)) * (U // 2)
                assert tb < tiles
                a(f"s_cmp_lg_u32 s{sCNT}, {tb}")
                a("s_cbranch_scc1 L_nobf")
                for s in range(4):
                    for t in range(4):
                        for h in range(2):
                            a(f"ds_read_b64_tr_b16 {vr(vBF+16*s+4*t+2*h,2)}, v{vA[t]} offset:{4096*s+512*h}")
                a.label("L_nobf")
        else:
            for j in range(n):
                for e in range(4):
                    a(f"v_lshlrev_b32 v{vU+2*e}, 16, v{R0+4*j+e}")
                    a(f"v_and_b32 v{vU+2*e+1}, s{sMASK}, v{R0+4*j+e}")
                for e in range(4):
                    a(f"v_pk_fma_f32 {vr(vACC+2*e,2)}, {vr(vU+2*e,2)}, {vr(S(j),2)}, {vr(vACC+2*e,2)} op_sel_hi:[1,0,1]")
            if not early:
                issue(it + F)
            if wo == "spread":
                a(f"s_cmp_ge_u32 s{sSO}, 0x20000")
                a(f"s_cbranch_scc1 L_nowo{it}")
                a(f"s_mov_b32 m0, s{sM0N}")
                a(f"s_add_u32 s{sM0N}, s{sM0N}, 0x400")
                a(f"buffer_load_dwordx4 v{vWOE}, {sr(sWO,4)}, s{sSO} offen{wf} lds")
                a(f"s_add_u32 s{sSO}, s{sSO}, 0x2000")
                a(f"v_xor_b32 v{vWOE}, 64, v{vWOE}")
                a.label(f"L_nowo{it}")
            a(f"s_add_u32 s{sCNT}, s{sCNT}, 1")
            if it == U - 1:
                a(f"s_cmp_lt_u32 s{sCNT}, {tiles}")
                a("s_cbranch_scc1 L_loop")
            elif tiles % (U // 2):
                a(f"s_cmp_ge_u32 s{sCNT}, {tiles}")
                a("s_cbranch_scc1 L_done")
    a.label("L_done")

    stamp(4)
    a(f"v_mul_f32 v{vM}, s{sC}, v{vM}")
    a("s_nop 0")
    a(f"v_mov_b32 v{vT0}, v{vM}")
    a(f"v_mov_b32 v{vT1}, v{vM}")
    a("s_nop 1")
    a(f"v_permlane32_swap_b32 v{vT0}, v{vT1}")
    a("s_nop 0")
    a(f"v_max_f32 v{vT0}, v{vT0}, v{vT1}")
    a("s_nop 0")
    a(f"v_mov_b32 v{vT1}, v{vT0}")
    a("s_nop 1")
    a(f"v_permlane16_swap_b32 v{vT0}, v{vT1}")
    a("s_nop 0")
    a(f"v_max_f32 v{vS}, v{vT0}, v{vT1}")
    a(f"v_sub_f32 v{vAL}, v{vM}, v{vS}")
    a(f"v_exp_f32 v{vAL}, v{vAL}")
    a("s_nop 0")
    a(f"v_mul_f32 v{vT0}, v{vAL}, v{vL}")
    for i in range(8):
        a(f"v_mul_f32 v{vACC+i}, v{vAL}, v{vACC+i}")
    a(f"v_mov_b32 v{vT1}, v{vT0}")
    a("s_nop 1")
    a(f"v_permlane32_swap_b32 v{vT0}, v{vT1}")
    rowreduce8(vACC, vU, vU + 1)
    a(f"v_add_f32 v{vT0}, v{vT0}, v{vT1}")
    a(f"v_cvt_pk_bf16_f32 v{vU+2}, v{vU}, v{vU+1}")
    a(f"v_mov_b32 v{vT1}, v{vT0}")
    a(f"v_lshlrev_b32 v{vU+4}, 16, v{vU+2}")
    a(f"v_and_b32 v{vU+5}, s{sMASK}, v{vU+2}")
    a(f"v_permlane16_swap_b32 v{vT0}, v{vT1}")
    a(f"v_sub_f32 v{vU+4}, v{vU}, v{vU+4}")
    a(f"v_sub_f32 v{vU+5}, v{vU+1}, v{vU+5}")
    a(f"v_add_f32 v{vS+1}, v{vT0}, v{vT1}")
    a(f"v_cvt_pk_bf16_f32 v{vU+3}, v{vU+4}, v{vU+5}")
    a(f"v_and_b32 v{vT0}, 15, v{vLANE}")
    a(f"v_lshrrev_b32 v{vT1}, 4, v{vLANE}")
    a(f"v_lshlrev_b32 v{vT2}, 4, v{vT0}")
    a(f"v_lshl_add_u32 v{vT2}, v{vT1}, 2, v{vT2}")
    a(f"s_mul_i32 s{sT0}, s{sWAVE}, {OA_STRIDE}")
    a(f"s_add_u32 s{sT0}, s{sT0}, {LDS_OA:#x}")
    a(f"v_add_u32 v{vT2}, s{sT0}, v{vT2}")
    a(f"ds_write_b32 v{vT2}, v{vU+2}")
    a(f"ds_write_b32 v{vT2}, v{vU+3} offset:{8*OA_STRIDE}")
    a(f"s_lshl_b32 s{sT0}, s{sWAVE}, 3")
    a(f"s_add_u32 s{sT0}, s{sT0}, {LDS_ML:#x}")
    a(f"v_mov_b32 v{vT2}, s{sT0}")
    a("s_mov_b64 exec, 1")
    a(f"ds_write_b64 v{vT2}, {vr(vS,2)}")
    a("s_mov_b64 exec, -1")
    a(f"v_mul_u32_u24 v{vT0}, {OA_STRIDE}, v{vT0}")
    a(f"v_lshl_add_u32 v{vT0}, v{vT1}, 4, v{vT0}")
    a(f"v_add_u32 v{vT0}, {LDS_OA:#x}, v{vT0}")
    a(f"v_and_b32 v{vT1}, 1, v{vT1}")
    a(f"v_lshlrev_b32 v{vT1}, 5, v{vT1}")
    a(f"v_add_u32 v{vT1}, {LDS_ML:#x}, v{vT1}")
    a(f"v_xor_b32 v{vT2}, 32, v{vT1}")
    a(f"s_lshl_b32 s{sT0}, s{sPROB}, 1")
    a(f"s_add_u32 s{sT0}, s{sT0}, s{sB}")
    a(f"s_lshl_b32 s{sT0}, s{sT0}, 3")
    a(f"s_add_u32 s{sT0}, s{sT0}, s{sWAVE}")
    a(f"s_mul_i32 s{sYOFF}, s{sT0}, {BLK}")
    a(f"s_lshl_b32 s{sT1}, s{sH}, 1")
    a(f"s_add_u32 s{sT1}, s{sT1}, s{sHALF}")
    a(f"s_and_b32 s{sT2}, s{sT1}, 15")
    a(f"s_lshl_b32 s{sT2}, s{sT2}, 2")
    a(f"s_lshr_b32 s{sT3}, s{sT1}, 4")
    a(f"s_add_u32 s{sT2}, s{sT2}, s{sT3}")
    a(f"s_lshl_b32 s{sT2}, s{sT2}, 8")
    a(f"s_add_u32 s{sT2}, s{sT2}, s{sYOFF}")
    a(f"s_lshl_b32 s{sT1}, s{sT1}, 3")
    a(f"s_add_u32 s{sT1}, s{sT1}, s{sYOFF}")
    a(f"s_add_u32 s{sT1}, s{sT1}, 0x4000")
    a("s_waitcnt vmcnt(0) lgkmcnt(0)")
    a("s_barrier")
    vE = vRING
    vAF = vE
    vML = vE + 16
    vD = vE + 32
    vSC = vE + 48
    for s in range(4):
        a(f"ds_read_b128 {vr(vAF+4*s,4)}, v{vT0} offset:{64*s}")
    a(f"ds_read_b128 {vr(vML,4)}, v{vT1}")
    a(f"ds_read_b128 {vr(vML+4,4)}, v{vT1} offset:16")
    a(f"ds_read_b128 {vr(vML+8,4)}, v{vT2}")
    a(f"ds_read_b128 {vr(vML+12,4)}, v{vT2} offset:16")
    for s in range(4):
        a(f"s_waitcnt lgkmcnt({7-s})")
        for t in range(4):
            c = "0" if s == 0 else vr(vD + 4 * t, 4)
            a(f"v_mfma_f32_16x16x32_bf16 {vr(vD+4*t,4)}, {vr(vAF+4*s,4)}, {vr(vBF+16*s+4*t,4)}, {c}")
    a("s_waitcnt lgkmcnt(0)")
    a(f"v_max3_f32 v{vMN}, v{vML}, v{vML+2}, v{vML+4}")
    a(f"v_max3_f32 v{vMN}, v{vML+6}, v{vML+8}, v{vMN}")
    a(f"v_max3_f32 v{vMN}, v{vML+10}, v{vML+12}, v{vMN}")
    a(f"v_max_f32 v{vS}, v{vML+14}, v{vMN}")
    for r in range(8):
        a(f"v_sub_f32 v{vSC+r}, v{vML+2*r}, v{vS}")
    for r in range(8):
        a(f"v_exp_f32 v{vSC+r}, v{vSC+r}")
    a(f"v_mul_f32 v{vS+1}, v{vSC}, v{vML+1}")
    for r in range(1, 8):
        a(f"v_fmac_f32 v{vS+1}, v{vSC+r}, v{vML+2*r+1}")
    a(f"v_lshlrev_b32 v{vT0}, 2, v{vLANE}")
    for t in range(4):
        a(f"v_mul_f32 v{vU+t}, v{vSC}, v{vD+4*t}")
    for r in range(1, 4):
        for t in range(4):
            a(f"v_fmac_f32 v{vU+t}, v{vSC+r}, v{vD+4*t+r}")
    a("s_nop 0")
    a(f"v_permlane32_swap_b32 v{vU}, v{vU+2}")
    a(f"v_permlane32_swap_b32 v{vU+1}, v{vU+3}")
    a("s_nop 0")
    a(f"v_add_f32 v{vU}, v{vU}, v{vU+2}")
    a(f"v_add_f32 v{vU+1}, v{vU+1}, v{vU+3}")
    a("s_nop 1")
    a(f"v_permlane16_swap_b32 v{vU}, v{vU+1}")
    a("s_nop 0")
    a(f"v_add_f32 v{vU}, v{vU}, v{vU+1}")
    a(f"buffer_store_dword v{vU}, v{vT0}, {sr(sY,4)}, s{sT2} offen")
    a("s_mov_b64 exec, 1")
    a(f"buffer_store_dwordx2 {vr(vS,2)}, v{vT0}, {sr(sY,4)}, s{sT1} offen")
    if diag:
        a("s_waitcnt vmcnt(0)")
        stamp(5)
        a(f"s_add_u32 s76, s{sWS}, 0x400000")
        a(f"s_addc_u32 s77, s{sWS+1}, 0")
        a("s_mov_b32 s78, 0x100000")
        a("s_mov_b32 s79, 0x00020000")
        a(f"s_lshl_b32 s{sT0}, s{sWG}, 3")
        a(f"s_add_u32 s{sT0}, s{sT0}, s{sWAVE}")
        a(f"s_lshl_b32 s{sT0}, s{sT0}, 5")
        a(f"s_getreg_b32 s{sT1}, hwreg(HW_REG_XCC_ID)")
        a(f"s_getreg_b32 s{sT2}, hwreg(HW_REG_HW_ID)")
        a("s_waitcnt lgkmcnt(0)")
        for i in range(6):
            a(f"v_mov_b32 v{vACC+i}, s{sST+2*i}")
        a(f"v_mov_b32 v{vACC+6}, s{sT1}")
        a(f"v_mov_b32 v{vACC+7}, s{sT2}")
        a(f"buffer_store_dwordx4 {vr(vACC,4)}, v{vT0}, s[76:79], s{sT0} offen")
        a(f"buffer_store_dwordx4 {vr(vACC+4,4)}, v{vT0}, s[76:79], s{sT0} offen offset:16")
    a.label("L_attn_end")
    a("s_endpgm")
    return a, NSGPR


def build(**kw):
    a1, s1 = gen_attn(**kw)
    a2, s2 = gen_reduce(kw.get("diag", False))
    k1 = NAME + "_kernel"
    out = HEADER
    out += f"; @launch kernel={k1} grid=(256,1,1) block=(512,1,1) lds={LDS_TOTAL}\n"
    out += "; @launch kernel=reduce_kernel grid=(32,1,1) block=(64,1,1) lds=0\n"
    out += '.amdgcn_target "amdgcn-amd-amdhsa--gfx950"\n.text\n'
    out += f".globl {k1}\n.p2align 8\n.type {k1},@function\n" + a1.text()
    out += ".globl reduce_kernel\n.p2align 8\n.type reduce_kernel,@function\n" + a2.text()
    out += '.section .rodata,"a"\n.p2align 6\n' + kd(k1, a1, s1) + ".p2align 6\n" + kd("reduce_kernel", a2, s2)
    return out


if __name__ == "__main__":
    import argparse
    ap = argparse.ArgumentParser()
    ap.add_argument("-o", default=f"cdna_kernels/{NAME}.s")
    ap.add_argument("--n", type=int, default=2)
    ap.add_argument("--F", type=int, default=2)
    ap.add_argument("--early", action="store_true")
    ap.add_argument("--kv", default="nt")
    ap.add_argument("--wf", default="nt")
    ap.add_argument("--diag", action="store_true")
    ap.add_argument("--wo", default="early")
    ap.add_argument("--map", default="xcd2")
    ap.add_argument("--noq", action="store_true")
    ap.add_argument("--rot", type=int, default=0)
    args = ap.parse_args()
    open(args.o, "w").write(build(n=args.n, F=args.F, early=args.early, kvflags=args.kv, wflags=args.wf,
                                  diag=args.diag, wo=args.wo, wmap=args.map, noq=args.noq, rot=args.rot))
```

```python
import sys, struct, math
from gen import HEADER, NAME, Asm, vr, sr, f32bits, kd, gen_reduce, BLK

LDS_WO = 0
LDS_QW = 131072
LDS_OA = 135168
OA_STRIDE = 272
LDS_ML = LDS_OA + 16 * OA_STRIDE
LDS_TOTAL = LDS_ML + 64


def lcm(a, b):
    return a * b // math.gcd(a, b)


def gen_attn(n=2, F=2, early=False, kvflags="nt", wflags="nt", diag=False, wo="early", wmap="xcd2", noq=False,
             rot=0, F0=0, tail="k2", sc="sc1"):
    W = 8
    a = Asm()
    C = (128.0 ** -0.5) * math.log2(math.e)
    tile_bytes = n * 1024
    step = W * tile_bytes
    tiles = (1 << 20) // step
    R = F + 1 if early else F
    U = lcm(2, R)
    kf = (" " + kvflags) if kvflags else ""
    wf = (" " + wflags) if wflags else ""

    sWG, sWAVE = 2, 3
    sP = 4
    sWS = 14
    sK, sV, sWQ, sWO, sX, sY = 16, 20, 24, 28, 32, 36
    sT0, sT1, sT2, sT3 = 40, 41, 42, 43
    sC, sMASK, sSELLO, sSELHI, sCNT, sOFF4K = 44, 45, 46, 47, 48, 49
    sH, sB, sHALF, sPROB = 50, 51, 52, 53
    sSO, sYOFF, sM0N = 54, 55, 56
    sRK, sRV, sIK, sIV, sRT = 57, 58, 59, 60, 61
    NSGPR = 64
    sOD = 80
    fused = tail == "fused"
    scf = (" " + sc) if fused else ""
    sST = 64
    if diag:
        NSGPR = 80
    if fused:
        NSGPR = 96

    def stamp(i):
        if diag:
            a(f"s_memrealtime {sr(sST+2*i,2)}")

    a.valloc(1)
    vLANE = a.valloc()
    vOK = a.valloc()
    vOV = a.valloc()
    vBASE = a.valloc()
    vT0 = a.valloc()
    vT1 = a.valloc()
    vT2 = a.valloc()
    vM = a.valloc()
    vL = a.valloc()
    vNMC = a.valloc()
    vMN = a.valloc()
    vWOE = a.valloc()
    vWOO = a.valloc()
    vA = [a.valloc() for _ in range(4)]
    vAL = a.valloc(2, 2)
    vQ = a.valloc(4, 4)
    vACC = a.valloc(8, 4)
    vS = a.valloc(max(2 * n, 16), 2)
    vU = a.valloc(8, 4)
    vBF = a.valloc(64, 4)
    vRING = a.valloc(max(4 * n * R, 56), 4)
    slot = lambda j: vRING + 4 * n * (j % R)
    vXP = vU
    S = lambda j: vS + 2 * j

    k = NAME + "_kernel"
    a.label(k)
    a(f"s_cmp_ge_u32 s{sWG}, 256")
    a("s_cbranch_scc1 L_attn_end")
    stamp(0)
    maps = {"xcd": "p34567012", "xcd2": "p34012567", "lin": "p06123457"}
    wm = maps.get(wmap, wmap)
    bits = [int(c) for c in wm[1:]]
    assert sorted(bits) == list(range(8))
    a(f"s_bfe_u32 s{sPROB}, s{sWG}, {0x10000 | bits[7]:#x}")
    a(f"s_mul_i32 s{sT2}, s{sPROB}, 40")
    a(f"s_load_dwordx8 {sr(sP, 8)}, s[0:1], s{sT2}")
    a(f"s_load_dwordx2 {sr(sP + 8, 2)}, s[0:1], s{sT2} offset:32")
    a(f"s_load_dwordx2 {sr(sWS, 2)}, s[0:1], 96")
    if fused:
        a(f"s_load_dwordx4 {sr(sOD, 4)}, s[0:1], 80")
    a(f"s_bfe_u32 s{sHALF}, s{sWG}, {0x10000 | bits[0]:#x}")
    a(f"s_bfe_u32 s{sB}, s{sWG}, {0x10000 | bits[1]:#x}")
    a(f"s_mov_b32 s{sH}, 0")
    i = 0
    while i < 5:
        j = i
        while j + 1 < 5 and bits[2 + j + 1] == bits[2 + j] + 1:
            j += 1
        a(f"s_bfe_u32 s{sT3}, s{sWG}, {((j - i + 1) << 16) | bits[2 + i]:#x}")
        if i:
            a(f"s_lshl_b32 s{sT3}, s{sT3}, {i}")
        a(f"s_or_b32 s{sH}, s{sH}, s{sT3}")
        i = j + 1
    a(f"v_lshrrev_b32 v{vT0}, 6, v0")
    a(f"v_and_b32 v{vLANE}, 63, v0")
    a(f"v_readfirstlane_b32 s{sWAVE}, v{vT0}")
    a(f"s_mov_b32 s{sC}, {f32bits(C):#x}")
    a(f"s_mov_b32 s{sMASK}, 0xffff0000")
    a(f"s_mov_b32 s{sSELLO}, 0x05040100")
    a(f"s_mov_b32 s{sSELHI}, 0x07060302")
    a(f"s_movk_i32 s{sOFF4K}, 0x1000")
    a(f"v_lshrrev_b32 v{vT0}, 4, v0")
    a(f"v_and_b32 v{vT1}, 15, v0")
    a(f"v_lshlrev_b32 v{vT1}, 4, v{vT1}")
    a(f"v_lshl_add_u32 v{vT1}, v{vT0}, 17, v{vT1}")
    a(f"v_lshlrev_b32 v{vT2}, 5, v{vT0}")
    a(f"v_lshlrev_b32 v{vBASE}, 4, v{vLANE}")
    a(f"s_mul_i32 s{sT0}, s{sWAVE}, {tile_bytes}")
    a(f"v_add_u32 v{vBASE}, s{sT0}, v{vBASE}")
    if rot:
        a(f"s_mul_i32 s{sRK}, s{sWG}, {rot * step}")
        a(f"s_and_b32 s{sRK}, s{sRK}, 0xfffff")
        a(f"s_mov_b32 s{sRV}, s{sRK}")
        a(f"s_mov_b32 s{sIK}, 0")
        a(f"s_mov_b32 s{sIV}, 0")
        a(f"v_add_u32 v{vOK}, s{sRK}, v{vBASE}")
        a(f"v_add_u32 v{vOV}, s{sRK}, v{vBASE}")
    else:
        a(f"v_mov_b32 v{vOK}, v{vBASE}")
        a(f"v_mov_b32 v{vOV}, v{vBASE}")
    a(f"s_lshl_b32 s{sT0}, s{sB}, 26")
    a(f"s_lshl_b32 s{sT1}, s{sH}, 21")
    a(f"s_lshl_b32 s{sT2}, s{sHALF}, 20")
    a(f"s_add_u32 s{sT0}, s{sT0}, s{sT1}")
    a(f"s_add_u32 s{sT0}, s{sT0}, s{sT2}")
    a(f"s_lshl_b32 s{sT1}, s{sH}, 8")
    a(f"s_lshl_b32 s{sT2}, s{sB}, 10")
    a(f"s_lshl_b32 s{sT3}, s{sH}, 17")
    for r, nrec in ((sK, 1 << 20), (sV, 1 << 20), (sWQ, 0 if noq else 511 * 8192 + 256), (sWO, 0 if noq else 131072),
                    (sX, 1024), (sY, 32 * BLK)):
        a(f"s_mov_b32 s{r+2}, {nrec:#x}")
        a(f"s_mov_b32 s{r+3}, 0x00020000")
    a("s_waitcnt lgkmcnt(0)")
    stamp(1)
    a(f"s_add_u32 s{sX}, s{sP}, s{sT2}")
    a(f"s_addc_u32 s{sX+1}, s{sP+1}, 0")
    a(f"s_add_u32 s{sWQ}, s{sP+6}, s{sT1}")
    a(f"s_addc_u32 s{sWQ+1}, s{sP+7}, 0")
    a(f"buffer_load_dwordx4 {vr(vXP,4)}, v{vT2}, {sr(sX,4)}, 0 offen")
    a(f"buffer_load_dwordx4 {vr(vXP+4,4)}, v{vT2}, {sr(sX,4)}, 0 offen offset:16")
    a(f"s_mov_b32 s{sSO}, 0")
    for j in range(16):
        a(f"buffer_load_dwordx4 {vr(vBF+4*j,4)}, v{vT1}, {sr(sWQ,4)}, s{sSO} offen{wf}")
        if j < 15:
            a(f"s_add_u32 s{sSO}, s{sSO}, 0x2000")
    a(f"s_add_u32 s{sK}, s{sP+2}, s{sT0}")
    a(f"s_addc_u32 s{sK+1}, s{sP+3}, 0")
    a(f"s_add_u32 s{sV}, s{sP+4}, s{sT0}")
    a(f"s_addc_u32 s{sV+1}, s{sP+5}, 0")

    def issue(item):
        isv = item & 1
        srd, vo = (sV, vOV) if isv else (sK, vOK)
        base = slot(item)
        for j in range(n):
            so = "0" if j < 4 else f"s{sOFF4K}"
            assert j < 8
            a(f"buffer_load_dwordx4 {vr(base+4*j,4)}, v{vo}, {sr(srd,4)}, {so} offen offset:{(j%4)*1024}{kf}")
        if rot:
            sR, sI = (sRV, sIV) if isv else (sRK, sIK)
            a(f"s_add_u32 s{sR}, s{sR}, {step:#x}")
            a(f"s_and_b32 s{sR}, s{sR}, 0xfffff")
            a(f"s_add_u32 s{sI}, s{sI}, 1")
            a(f"s_cmp_lt_u32 s{sI}, {tiles}")
            a(f"s_cselect_b32 s{sRT}, s{sR}, 0x100000")
            a(f"v_add_u32 v{vo}, s{sRT}, v{vBASE}")
        else:
            a(f"v_add_u32 v{vo}, {step:#x}, v{vo}")

    for it in range(F):
        issue(it)
    a(f"s_add_u32 s{sWO}, s{sP+8}, s{sT3}")
    a(f"s_addc_u32 s{sWO+1}, s{sP+9}, 0")
    a(f"s_mov_b32 s{sY}, s{sWS}")
    a(f"s_mov_b32 s{sY+1}, s{sWS+1}")
    a(f"v_lshrrev_b32 v{vT0}, 3, v{vLANE}")
    a(f"v_lshlrev_b32 v{vT0}, 10, v{vT0}")
    a(f"v_and_b32 v{vT1}, 7, v{vLANE}")
    a(f"v_lshrrev_b32 v{vT2}, 3, v{vLANE}")
    a(f"v_and_b32 v{vT2}, 2, v{vT2}")
    a(f"v_xor_b32 v{vT1}, v{vT1}, v{vT2}")
    a(f"v_lshl_add_u32 v{vT0}, v{vT1}, 4, v{vT0}")
    a(f"s_lshl_b32 s{sT0}, s{sWAVE}, 7")
    a(f"v_add_u32 v{vWOE}, s{sT0}, v{vT0}")
    a(f"v_xor_b32 v{vWOO}, 64, v{vWOE}")
    a(f"s_lshl_b32 s{sM0N}, s{sWAVE}, 14")
    a(f"s_mov_b32 s{sSO}, 0")

    def wo_all():
        for q in range(16):
            a(f"s_mov_b32 m0, s{sM0N}")
            a(f"s_add_u32 s{sM0N}, s{sM0N}, 0x400")
            a(f"buffer_load_dwordx4 v{vWOE if q % 2 == 0 else vWOO}, {sr(sWO,4)}, s{sSO} offen{wf} lds")
            if q < 15:
                a(f"s_add_u32 s{sSO}, s{sSO}, 0x2000")
    if wo == "early":
        wo_all()
    a(f"v_mov_b32 v{vM}, 0xff7fffff")
    a(f"v_mov_b32 v{vL}, 0")
    for i in range(8):
        a(f"v_mov_b32 v{vACC+i}, 0")
    a(f"s_waitcnt vmcnt({F*n + (16 if wo == 'early' else 0)})")
    stamp(2)
    if wo == "late":
        wo_all()
    for i in range(8):
        for e in range(4):
            w0 = vBF + 4 * (2 * i) + e
            w1 = vBF + 4 * (2 * i + 1) + e
            a(f"v_perm_b32 v{vS + 2*e}, v{w1}, v{w0}, s{sSELLO}")
            a(f"v_perm_b32 v{vS + 2*e+1}, v{w1}, v{w0}, s{sSELHI}")
        for e in range(8):
            a(f"v_dot2c_f32_bf16 v{vACC+e}, v{vS+e}, v{vXP+i}")
    a("s_nop 2")

    def rowreduce8(acc, u0, u1):
        a(f"v_permlane32_swap_b32 v{acc+0}, v{acc+4}")
        a(f"v_permlane32_swap_b32 v{acc+2}, v{acc+6}")
        a(f"v_permlane32_swap_b32 v{acc+1}, v{acc+5}")
        a(f"v_permlane32_swap_b32 v{acc+3}, v{acc+7}")
        a(f"v_add_f32 v{acc+0}, v{acc+0}, v{acc+4}")
        a(f"v_add_f32 v{acc+2}, v{acc+2}, v{acc+6}")
        a(f"v_add_f32 v{acc+1}, v{acc+1}, v{acc+5}")
        a(f"v_add_f32 v{acc+3}, v{acc+3}, v{acc+7}")
        a("s_nop 1")
        a(f"v_permlane16_swap_b32 v{acc+0}, v{acc+2}")
        a(f"v_permlane16_swap_b32 v{acc+1}, v{acc+3}")
        a("s_nop 0")
        a(f"v_add_f32 v{u0}, v{acc+0}, v{acc+2}")
        a(f"v_add_f32 v{u1}, v{acc+1}, v{acc+3}")

    rowreduce8(vACC, vU, vU + 1)
    a(f"v_and_b32 v{vT0}, 15, v{vLANE}")
    a(f"v_lshrrev_b32 v{vT1}, 4, v{vLANE}")
    a(f"v_lshlrev_b32 v{vT0}, 5, v{vT0}")
    a(f"v_lshl_add_u32 v{vT0}, v{vT1}, 3, v{vT0}")
    a(f"v_add_u32 v{vT0}, {LDS_QW:#x}, v{vT0}")
    a(f"s_lshl_b32 s{sT0}, s{sWAVE}, 9")
    a(f"v_add_u32 v{vT1}, s{sT0}, v{vT0}")
    a(f"ds_write_b64 v{vT1}, {vr(vU,2)}")
    for i in range(8):
        a(f"v_mov_b32 v{vACC+i}, 0")
    a(f"v_lshrrev_b32 v{vA[1]}, 4, v{vLANE}")
    a(f"v_bfe_u32 v{vT1}, v{vLANE}, 2, 2")
    a(f"v_lshl_add_u32 v{vT1}, v{vA[1]}, 3, v{vT1}")
    a(f"v_lshlrev_b32 v{vT1}, 7, v{vT1}")
    a(f"v_bfe_u32 v{vT2}, v{vLANE}, 3, 2")
    a(f"v_lshl_add_u32 v{vT1}, v{vT2}, 5, v{vT1}")
    a(f"v_and_b32 v{vT2}, 3, v{vLANE}")
    a(f"v_lshl_add_u32 v{vT1}, v{vT2}, 3, v{vT1}")
    a(f"s_lshl_b32 s{sT0}, s{sWAVE}, 14")
    a(f"v_add_u32 v{vA[0]}, s{sT0}, v{vT1}")
    for t in range(1, 4):
        a(f"v_xor_b32 v{vA[t]}, {t<<5}, v{vA[0]}")
    a(f"s_mov_b32 s{sCNT}, 0")
    a("s_waitcnt lgkmcnt(0)")
    a("s_barrier")
    for w in range(8):
        a(f"ds_read_b64 {vr(vS+2*w,2)}, v{vT0} offset:{w*512}")
    a("s_waitcnt lgkmcnt(0)")
    for w in range(1, 8):
        a(f"v_add_f32 v{vS}, v{vS}, v{vS+2*w}")
        a(f"v_add_f32 v{vS+1}, v{vS+1}, v{vS+2*w+1}")
    a(f"v_cvt_pk_bf16_f32 v{vQ}, v{vS}, v{vS+1}")
    a("s_nop 0")
    a(f"v_mov_b32 v{vQ+1}, v{vQ}")
    a("s_nop 1")
    a(f"v_permlane16_swap_b32 v{vQ}, v{vQ+1}")
    a("s_nop 0")
    a(f"v_mov_b32 v{vQ+2}, v{vQ}")
    a(f"v_mov_b32 v{vQ+3}, v{vQ+1}")
    a("s_nop 1")
    a(f"v_permlane32_swap_b32 v{vQ}, v{vQ+2}")
    a(f"v_permlane32_swap_b32 v{vQ+1}, v{vQ+3}")
    stamp(3)

    a.lines.append(".p2align 6")
    a.label("L_loop")
    WAIT = (F - 1) * n
    t_bf = (F + 1) // 2 + 1 if wo != "spread" else 16 + (F + 1) // 2 + 1
    for it in range(U):
        R0 = slot(it)
        a(f"s_waitcnt vmcnt({WAIT})")
        if early:
            issue(it + F)
        if it % 2 == 0:
            for kk in range(4):
                for j in range(n):
                    if kk == 0:
                        a(f"v_dot2_f32_bf16 v{S(j)}, v{R0+4*j}, v{vQ}, 0")
                    else:
                        a(f"v_dot2c_f32_bf16 v{S(j)}, v{R0+4*j+kk}, v{vQ+kk}")
                if kk == 0 and n < 4:
                    a(f"s_nop {3 - n}")
            if not early:
                issue(it + F)
                gap = 2 * n
            else:
                gap = n - 1
            if gap < 3:
                a(f"s_nop {3 - gap - 1}")
            for st in (8, 4, 2, 1):
                for j in range(n):
                    a(f"v_add_f32_dpp v{S(j)}, v{S(j)}, v{S(j)} row_ror:{st} row_mask:0xf bank_mask:0xf")
                if n < 3 and st != 1:
                    a(f"s_nop {2 - n}")
            if n == 1:
                a(f"v_max_f32 v{vMN}, v{S(0)}, v{vM}")
            else:
                a(f"v_max3_f32 v{vMN}, v{S(0)}, v{S(1)}, v{vM}")
            for j in range(2, n - 1, 2):
                a(f"v_max3_f32 v{vMN}, v{S(j)}, v{S(j+1)}, v{vMN}")
            if n > 1 and n % 2:
                a(f"v_max_f32 v{vMN}, v{S(n-1)}, v{vMN}")
            a(f"v_mul_f32 v{vNMC}, s{sC}, v{vMN}")
            a(f"v_fma_f32 v{vAL}, v{vM}, s{sC}, -v{vNMC}")
            for j in range(n):
                a(f"v_fma_f32 v{S(j)}, v{S(j)}, s{sC}, -v{vNMC}")
            a(f"v_exp_f32 v{vAL}, v{vAL}")
            for j in range(n):
                a(f"v_exp_f32 v{S(j)}, v{S(j)}")
            a(f"v_mov_b32 v{vM}, v{vMN}")
            for i in range(0, 8, 2):
                a(f"v_pk_mul_f32 {vr(vACC+i,2)}, {vr(vACC+i,2)}, {vr(vAL,2)} op_sel_hi:[1,0]")
            a(f"v_fma_f32 v{vL}, v{vL}, v{vAL}, v{S(0)}")
            for j in range(1, n):
                a(f"v_add_f32 v{vL}, v{vL}, v{S(j)}")
            if it == 0:
                tb = -(-t_bf // (U // 2)) * (U // 2)
                assert tb < tiles
                a(f"s_cmp_lg_u32 s{sCNT}, {tb}")
                a("s_cbranch_scc1 L_nobf")
                for s in range(4):
                    for t in range(4):
                        for h in range(2):
                            a(f"ds_read_b64_tr_b16 {vr(vBF+16*s+4*t+2*h,2)}, v{vA[t]} offset:{4096*s+512*h}")
                a.label("L_nobf")
        else:
            for j in range(n):
                for e in range(4):
                    a(f"v_lshlrev_b32 v{vU+2*e}, 16, v{R0+4*j+e}")
                    a(f"v_and_b32 v{vU+2*e+1}, s{sMASK}, v{R0+4*j+e}")
                for e in range(4):
                    a(f"v_pk_fma_f32 {vr(vACC+2*e,2)}, {vr(vU+2*e,2)}, {vr(S(j),2)}, {vr(vACC+2*e,2)} op_sel_hi:[1,0,1]")
            if not early:
                issue(it + F)
            if wo == "spread":
                a(f"s_cmp_ge_u32 s{sSO}, 0x20000")
                a(f"s_cbranch_scc1 L_nowo{it}")
                a(f"s_mov_b32 m0, s{sM0N}")
                a(f"s_add_u32 s{sM0N}, s{sM0N}, 0x400")
                a(f"buffer_load_dwordx4 v{vWOE}, {sr(sWO,4)}, s{sSO} offen{wf} lds")
                a(f"s_add_u32 s{sSO}, s{sSO}, 0x2000")
                a(f"v_xor_b32 v{vWOE}, 64, v{vWOE}")
                a.label(f"L_nowo{it}")
            a(f"s_add_u32 s{sCNT}, s{sCNT}, 1")
            if it == U - 1:
                a(f"s_cmp_lt_u32 s{sCNT}, {tiles}")
                a("s_cbranch_scc1 L_loop")
            elif tiles % (U // 2):
                a(f"s_cmp_ge_u32 s{sCNT}, {tiles}")
                a("s_cbranch_scc1 L_done")
    a.label("L_done")

    stamp(4)
    a(f"v_mul_f32 v{vM}, s{sC}, v{vM}")
    a("s_nop 0")
    a(f"v_mov_b32 v{vT0}, v{vM}")
    a(f"v_mov_b32 v{vT1}, v{vM}")
    a("s_nop 1")
    a(f"v_permlane32_swap_b32 v{vT0}, v{vT1}")
    a("s_nop 0")
    a(f"v_max_f32 v{vT0}, v{vT0}, v{vT1}")
    a("s_nop 0")
    a(f"v_mov_b32 v{vT1}, v{vT0}")
    a("s_nop 1")
    a(f"v_permlane16_swap_b32 v{vT0}, v{vT1}")
    a("s_nop 0")
    a(f"v_max_f32 v{vS}, v{vT0}, v{vT1}")
    a(f"v_sub_f32 v{vAL}, v{vM}, v{vS}")
    a(f"v_exp_f32 v{vAL}, v{vAL}")
    a("s_nop 0")
    a(f"v_mul_f32 v{vT0}, v{vAL}, v{vL}")
    for i in range(8):
        a(f"v_mul_f32 v{vACC+i}, v{vAL}, v{vACC+i}")
    a(f"v_mov_b32 v{vT1}, v{vT0}")
    a("s_nop 1")
    a(f"v_permlane32_swap_b32 v{vT0}, v{vT1}")
    rowreduce8(vACC, vU, vU + 1)
    a(f"v_add_f32 v{vT0}, v{vT0}, v{vT1}")
    a(f"v_cvt_pk_bf16_f32 v{vU+2}, v{vU}, v{vU+1}")
    a(f"v_mov_b32 v{vT1}, v{vT0}")
    a(f"v_lshlrev_b32 v{vU+4}, 16, v{vU+2}")
    a(f"v_and_b32 v{vU+5}, s{sMASK}, v{vU+2}")
    a(f"v_permlane16_swap_b32 v{vT0}, v{vT1}")
    a(f"v_sub_f32 v{vU+4}, v{vU}, v{vU+4}")
    a(f"v_sub_f32 v{vU+5}, v{vU+1}, v{vU+5}")
    a(f"v_add_f32 v{vS+1}, v{vT0}, v{vT1}")
    a(f"v_cvt_pk_bf16_f32 v{vU+3}, v{vU+4}, v{vU+5}")
    a(f"v_and_b32 v{vT0}, 15, v{vLANE}")
    a(f"v_lshrrev_b32 v{vT1}, 4, v{vLANE}")
    a(f"v_lshlrev_b32 v{vT2}, 4, v{vT0}")
    a(f"v_lshl_add_u32 v{vT2}, v{vT1}, 2, v{vT2}")
    a(f"s_mul_i32 s{sT0}, s{sWAVE}, {OA_STRIDE}")
    a(f"s_add_u32 s{sT0}, s{sT0}, {LDS_OA:#x}")
    a(f"v_add_u32 v{vT2}, s{sT0}, v{vT2}")
    a(f"ds_write_b32 v{vT2}, v{vU+2}")
    a(f"ds_write_b32 v{vT2}, v{vU+3} offset:{8*OA_STRIDE}")
    a(f"s_lshl_b32 s{sT0}, s{sWAVE}, 3")
    a(f"s_add_u32 s{sT0}, s{sT0}, {LDS_ML:#x}")
    a(f"v_mov_b32 v{vT2}, s{sT0}")
    a("s_mov_b64 exec, 1")
    a(f"ds_write_b64 v{vT2}, {vr(vS,2)}")
    a("s_mov_b64 exec, -1")
    a(f"v_mul_u32_u24 v{vT0}, {OA_STRIDE}, v{vT0}")
    a(f"v_lshl_add_u32 v{vT0}, v{vT1}, 4, v{vT0}")
    a(f"v_add_u32 v{vT0}, {LDS_OA:#x}, v{vT0}")
    a(f"v_and_b32 v{vT1}, 1, v{vT1}")
    a(f"v_lshlrev_b32 v{vT1}, 5, v{vT1}")
    a(f"v_add_u32 v{vT1}, {LDS_ML:#x}, v{vT1}")
    a(f"v_xor_b32 v{vT2}, 32, v{vT1}")
    a(f"s_lshl_b32 s{sT0}, s{sPROB}, 1")
    a(f"s_add_u32 s{sT0}, s{sT0}, s{sB}")
    a(f"s_lshl_b32 s{sT0}, s{sT0}, 3")
    a(f"s_add_u32 s{sT0}, s{sT0}, s{sWAVE}")
    a(f"s_mul_i32 s{sYOFF}, s{sT0}, {BLK}")
    a(f"s_lshl_b32 s{sT1}, s{sH}, 1")
    a(f"s_add_u32 s{sT1}, s{sT1}, s{sHALF}")
    a(f"s_and_b32 s{sT2}, s{sT1}, 15")
    a(f"s_lshl_b32 s{sT2}, s{sT2}, 2")
    a(f"s_lshr_b32 s{sT3}, s{sT1}, 4")
    a(f"s_add_u32 s{sT2}, s{sT2}, s{sT3}")
    a(f"s_lshl_b32 s{sT2}, s{sT2}, 8")
    a(f"s_add_u32 s{sT2}, s{sT2}, s{sYOFF}")
    a(f"s_lshl_b32 s{sT1}, s{sT1}, 3")
    a(f"s_add_u32 s{sT1}, s{sT1}, s{sYOFF}")
    a(f"s_add_u32 s{sT1}, s{sT1}, 0x4000")
    a("s_waitcnt vmcnt(0) lgkmcnt(0)")
    a("s_barrier")
    vE = vRING
    vAF = vE
    vML = vE + 16
    vD = vE + 32
    vSC = vE + 48
    for s in range(4):
        a(f"ds_read_b128 {vr(vAF+4*s,4)}, v{vT0} offset:{64*s}")
    a(f"ds_read_b128 {vr(vML,4)}, v{vT1}")
    a(f"ds_read_b128 {vr(vML+4,4)}, v{vT1} offset:16")
    a(f"ds_read_b128 {vr(vML+8,4)}, v{vT2}")
    a(f"ds_read_b128 {vr(vML+12,4)}, v{vT2} offset:16")
    for s in range(4):
        a(f"s_waitcnt lgkmcnt({7-s})")
        for t in range(4):
            c = "0" if s == 0 else vr(vD + 4 * t, 4)
            a(f"v_mfma_f32_16x16x32_bf16 {vr(vD+4*t,4)}, {vr(vAF+4*s,4)}, {vr(vBF+16*s+4*t,4)}, {c}")
    a("s_waitcnt lgkmcnt(0)")
    a(f"v_max3_f32 v{vMN}, v{vML}, v{vML+2}, v{vML+4}")
    a(f"v_max3_f32 v{vMN}, v{vML+6}, v{vML+8}, v{vMN}")
    a(f"v_max3_f32 v{vMN}, v{vML+10}, v{vML+12}, v{vMN}")
    a(f"v_max_f32 v{vS}, v{vML+14}, v{vMN}")
    for r in range(8):
        a(f"v_sub_f32 v{vSC+r}, v{vML+2*r}, v{vS}")
    for r in range(8):
        a(f"v_exp_f32 v{vSC+r}, v{vSC+r}")
    a(f"v_mul_f32 v{vS+1}, v{vSC}, v{vML+1}")
    for r in range(1, 8):
        a(f"v_fmac_f32 v{vS+1}, v{vSC+r}, v{vML+2*r+1}")
    a(f"v_lshlrev_b32 v{vT0}, 2, v{vLANE}")
    for t in range(4):
        a(f"v_mul_f32 v{vU+t}, v{vSC}, v{vD+4*t}")
    for r in range(1, 4):
        for t in range(4):
            a(f"v_fmac_f32 v{vU+t}, v{vSC+r}, v{vD+4*t+r}")
    a("s_nop 0")
    a(f"v_permlane32_swap_b32 v{vU}, v{vU+2}")
    a(f"v_permlane32_swap_b32 v{vU+1}, v{vU+3}")
    a("s_nop 0")
    a(f"v_add_f32 v{vU}, v{vU}, v{vU+2}")
    a(f"v_add_f32 v{vU+1}, v{vU+1}, v{vU+3}")
    a("s_nop 1")
    a(f"v_permlane16_swap_b32 v{vU}, v{vU+1}")
    a("s_nop 0")
    a(f"v_add_f32 v{vU}, v{vU}, v{vU+1}")
    a(f"buffer_store_dword v{vU}, v{vT0}, {sr(sY,4)}, s{sT2} offen{scf}")
    a("s_mov_b64 exec, 1")
    a(f"buffer_store_dwordx2 {vr(vS,2)}, v{vT0}, {sr(sY,4)}, s{sT1} offen{scf}")
    if fused:
        a("s_mov_b64 exec, -1")
        a(f"s_mov_b32 s84, s{sOD}")
        a(f"s_mov_b32 s85, s{sOD+1}")
        a("s_movk_i32 s86, 0x1000")
        a("s_mov_b32 s87, 0x00020000")
        a(f"s_mov_b32 s88, s{sOD+2}")
        a(f"s_mov_b32 s89, s{sOD+3}")
        a("s_movk_i32 s90, 0x100")
        a("s_mov_b32 s91, 0x00020000")
        a(f"s_lshl_b32 s{sT0}, s{sPROB}, 1")
        a(f"s_add_u32 s{sT0}, s{sT0}, s{sB}")
        a(f"s_lshl_b32 s{sT0}, s{sT0}, 6")
        a(f"v_mov_b32 v{vT1}, 1")
        a(f"v_mov_b32 v{vT2}, {LDS_ML:#x}")
        a(f"s_add_u32 s92, s{sYOFF}, 0x1000")
        a(f"s_add_u32 s93, s{sYOFF}, 0x2000")
        a(f"s_add_u32 s94, s{sYOFF}, 0x3000")
        a(f"s_add_u32 s95, s{sYOFF}, 0x4000")
        a("s_waitcnt vmcnt(0)")
        a("s_barrier")
        a(f"s_cmp_lg_u32 s{sWAVE}, 0")
        a("s_cbranch_scc1 L_noatom")
        a("s_mov_b64 exec, 1")
        a(f"buffer_atomic_add v{vT1}, v{vT0}, s[88:91], s{sT0} offen sc0 sc1")
        a("s_waitcnt vmcnt(0)")
        a(f"ds_write_b32 v{vT2}, v{vT1}")
        a("s_mov_b64 exec, -1")
        a("s_waitcnt lgkmcnt(0)")
        a.label("L_noatom")
        a("s_barrier")
        a(f"ds_read_b32 v{vT1}, v{vT2}")
        vY = vBF
        vRM = vE
        vRA = vE + 4
        vW = vE + 8
        vO1 = vE + 9
        vO2 = vE + 10
        a(f"v_lshlrev_b32 v{vO1}, 4, v{vLANE}")
        a(f"v_lshrrev_b32 v{vO2}, 1, v{vLANE}")
        a(f"v_lshlrev_b32 v{vO2}, 4, v{vO2}")
        a("s_waitcnt lgkmcnt(0)")
        a(f"v_readfirstlane_b32 s{sT0}, v{vT1}")
        a("s_nop 3")
        a(f"s_cmp_lg_u32 s{sT0}, 63")
        a("s_cbranch_scc1 L_fin")
        a(f"buffer_load_dwordx4 {vr(vRM,4)}, v{vO2}, {sr(sY,4)}, s95 offen{scf}")
        for i in range(16):
            so = f"s{sYOFF}" if i < 4 else f"s{91 + i // 4}"
            a(f"buffer_load_dwordx4 {vr(vY+4*i,4)}, v{vO1}, {sr(sY,4)}, {so} offen offset:{(i%4)*1024}{scf}")
        a(f"s_lshl_b32 s{sT0}, s{sB}, 11")
        a(f"s_lshl_b32 s{sT1}, s{sPROB}, 10")
        a(f"s_add_u32 s{sT0}, s{sT0}, s{sT1}")
        a(f"s_lshl_b32 s{sT1}, s{sWAVE}, 7")
        a(f"s_add_u32 s{sT0}, s{sT0}, s{sT1}")
        a(f"v_and_b32 v{vT1}, 15, v{vLANE}")
        a(f"v_lshrrev_b32 v{vT2}, 4, v{vLANE}")
        a(f"v_lshl_add_u32 v{vO1}, v{vT1}, 2, v{vT2}")
        a(f"v_lshlrev_b32 v{vO1}, 1, v{vO1}")
        a(f"v_and_b32 v{vT1}, 1, v{vLANE}")
        a(f"v_cmp_eq_u32 vcc, 1, v{vT1}")
        a("s_waitcnt vmcnt(16)")
        a(f"v_max_f32 v{vT1}, v{vRM}, v{vRM+2}")
        a(f"v_sub_f32 v{vRM}, v{vRM}, v{vT1}")
        a(f"v_sub_f32 v{vRM+2}, v{vRM+2}, v{vT1}")
        a(f"v_exp_f32 v{vRM}, v{vRM}")
        a(f"v_exp_f32 v{vRM+2}, v{vRM+2}")
        a("s_nop 0")
        a(f"v_mul_f32 v{vT1}, v{vRM}, v{vRM+1}")
        a(f"v_fmac_f32 v{vT1}, v{vRM+2}, v{vRM+3}")
        a(f"v_rcp_f32 v{vT1}, v{vT1}")
        a(f"v_cndmask_b32 v{vW}, v{vRM}, v{vRM+2}, vcc")
        a(f"v_mul_f32 v{vW}, v{vW}, v{vT1}")
        for e in range(4):
            a(f"v_mov_b32 v{vRA+e}, 0")
        for i in range(16):
            a(f"s_waitcnt vmcnt({15-i})")
            for e in range(4):
                a(f"v_fmac_f32_dpp v{vRA+e}, v{vW}, v{vY+4*i+e} row_newbcast:{i} row_mask:0xf bank_mask:0xf")
        a("s_nop 1")
        a(f"v_permlane32_swap_b32 v{vRA}, v{vRA+2}")
        a(f"v_permlane32_swap_b32 v{vRA+1}, v{vRA+3}")
        a("s_nop 0")
        a(f"v_add_f32 v{vRA}, v{vRA}, v{vRA+2}")
        a(f"v_add_f32 v{vRA+1}, v{vRA+1}, v{vRA+3}")
        a("s_nop 1")
        a(f"v_permlane16_swap_b32 v{vRA}, v{vRA+1}")
        a("s_nop 0")
        a(f"v_add_f32 v{vRA}, v{vRA}, v{vRA+1}")
        a(f"v_cvt_pk_bf16_f32 v{vRA}, v{vRA}, v{vRA}")
        a(f"buffer_store_short v{vRA}, v{vO1}, s[84:87], s{sT0} offen")
        a.label("L_fin")
        a("s_mov_b64 exec, 1")
    if diag:
        a("s_waitcnt vmcnt(0)")
        stamp(5)
        a(f"s_add_u32 s76, s{sWS}, 0x400000")
        a(f"s_addc_u32 s77, s{sWS+1}, 0")
        a("s_mov_b32 s78, 0x100000")
        a("s_mov_b32 s79, 0x00020000")
        a(f"s_lshl_b32 s{sT0}, s{sWG}, 3")
        a(f"s_add_u32 s{sT0}, s{sT0}, s{sWAVE}")
        a(f"s_lshl_b32 s{sT0}, s{sT0}, 5")
        a(f"s_getreg_b32 s{sT1}, hwreg(HW_REG_XCC_ID)")
        a(f"s_getreg_b32 s{sT2}, hwreg(HW_REG_HW_ID)")
        a("s_waitcnt lgkmcnt(0)")
        for i in range(6):
            a(f"v_mov_b32 v{vACC+i}, s{sST+2*i}")
        a(f"v_mov_b32 v{vACC+6}, s{sT1}")
        a(f"v_mov_b32 v{vACC+7}, s{sT2}")
        a(f"buffer_store_dwordx4 {vr(vACC,4)}, v{vT0}, s[76:79], s{sT0} offen")
        a(f"buffer_store_dwordx4 {vr(vACC+4,4)}, v{vT0}, s[76:79], s{sT0} offen offset:16")
    a.label("L_attn_end")
    a("s_endpgm")
    return a, NSGPR


def build(**kw):
    a1, s1 = gen_attn(**kw)
    k1 = NAME + "_kernel"
    out = HEADER
    if kw.get("tail") == "fused":
        out += f"; @launch grid=(256,1,1) block=(512,1,1) lds={LDS_TOTAL}\n"
        out += '.amdgcn_target "amdgcn-amd-amdhsa--gfx950"\n.text\n'
        out += f".globl {k1}\n.p2align 8\n.type {k1},@function\n" + a1.text()
        out += '.section .rodata,"a"\n.p2align 6\n' + kd(k1, a1, s1)
        return out
    a2, s2 = gen_reduce(kw.get("diag", False))
    out += f"; @launch kernel={k1} grid=(256,1,1) block=(512,1,1) lds={LDS_TOTAL}\n"
    out += "; @launch kernel=reduce_kernel grid=(32,1,1) block=(64,1,1) lds=0\n"
    out += '.amdgcn_target "amdgcn-amd-amdhsa--gfx950"\n.text\n'
    out += f".globl {k1}\n.p2align 8\n.type {k1},@function\n" + a1.text()
    out += ".globl reduce_kernel\n.p2align 8\n.type reduce_kernel,@function\n" + a2.text()
    out += '.section .rodata,"a"\n.p2align 6\n' + kd(k1, a1, s1) + ".p2align 6\n" + kd("reduce_kernel", a2, s2)
    return out


if __name__ == "__main__":
    import argparse
    ap = argparse.ArgumentParser()
    ap.add_argument("-o", default=f"cdna_kernels/{NAME}.s")
    ap.add_argument("--n", type=int, default=2)
    ap.add_argument("--F", type=int, default=2)
    ap.add_argument("--early", action="store_true")
    ap.add_argument("--kv", default="nt")
    ap.add_argument("--wf", default="nt")
    ap.add_argument("--diag", action="store_true")
    ap.add_argument("--wo", default="early")
    ap.add_argument("--map", default="xcd2")
    ap.add_argument("--noq", action="store_true")
    ap.add_argument("--rot", type=int, default=0)
    ap.add_argument("--tail", default="k2")
    ap.add_argument("--sc", default="sc1")
    args = ap.parse_args()
    open(args.o, "w").write(build(n=args.n, F=args.F, early=args.early, kvflags=args.kv, wflags=args.wf,
                                  diag=args.diag, wo=args.wo, wmap=args.map, noq=args.noq, rot=args.rot, tail=args.tail, sc=args.sc))
```

```python
import sys, struct, math
from gen import HEADER, NAME, Asm, vr, sr, f32bits, kd, gen_reduce, BLK

LDS_WO = 0
LDS_QW = 131072
LDS_OA = 135168
OA_STRIDE = 272
LDS_ML = LDS_OA + 16 * OA_STRIDE
LDS_TOTAL = LDS_ML + 64


def lcm(a, b):
    return a * b // math.gcd(a, b)


def gen_attn(n=2, F=2, early=False, kvflags="nt", wflags="nt", diag=False, wo="early", wmap="xcd2", noq=False,
             rot=0, F0=0, tail="k2", sc="sc1", probe=None, F2=0, f2mask=1):
    W = 8
    a = Asm()
    C = (128.0 ** -0.5) * math.log2(math.e)
    tile_bytes = n * 1024
    step = W * tile_bytes
    tiles = (1 << 20) // step
    R = F + 1 if early else F
    if F2:
        assert early and F2 > F
        R = F2 + 1
    U = lcm(2, R)
    kf = (" " + kvflags) if kvflags else ""
    wf = (" " + wflags) if wflags else ""

    sWG, sWAVE = 2, 3
    sP = 4
    sWS = 14
    sK, sV, sWQ, sWO, sX, sY = 16, 20, 24, 28, 32, 36
    sT0, sT1, sT2, sT3 = 40, 41, 42, 43
    sC, sMASK, sSELLO, sSELHI, sCNT, sOFF4K = 44, 45, 46, 47, 48, 49
    sH, sB, sHALF, sPROB = 50, 51, 52, 53
    sSO, sYOFF, sM0N = 54, 55, 56
    sRK, sRV, sIK, sIV, sRT = 57, 58, 59, 60, 61
    NSGPR = 64
    sOD = 80
    fused = tail == "fused"
    scf = (" " + sc) if fused else ""
    sST = 64
    if diag:
        NSGPR = 80
    if fused:
        NSGPR = 96

    def stamp(i):
        if diag or probe:
            a(f"s_memrealtime {sr(sST+2*i,2)}")

    a.valloc(1)
    vLANE = a.valloc()
    vOK = a.valloc()
    vOV = a.valloc()
    vBASE = a.valloc()
    vT0 = a.valloc()
    vT1 = a.valloc()
    vT2 = a.valloc()
    vM = a.valloc()
    vL = a.valloc()
    vNMC = a.valloc()
    vMN = a.valloc()
    vWOE = a.valloc()
    vWOO = a.valloc()
    vA = [a.valloc() for _ in range(4)]
    vAL = a.valloc(2, 2)
    vQ = a.valloc(4, 4)
    vACC = a.valloc(8, 4)
    vS = a.valloc(max(2 * n, 16), 2)
    vU = a.valloc(8, 4)
    vBF = a.valloc(64, 4)
    vRING = a.valloc(max(4 * n * R, 56), 4)
    slot = lambda j: vRING + 4 * n * (j % R)
    vXP = vU
    S = lambda j: vS + 2 * j

    k = NAME + "_kernel"
    a.label(k)
    a(f"s_cmp_ge_u32 s{sWG}, 256")
    a("s_cbranch_scc1 L_attn_end")
    stamp(0)
    maps = {"xcd": "p34567012", "xcd2": "p34012567", "lin": "p06123457"}
    wm = maps.get(wmap, wmap)
    bits = [int(c) for c in wm[1:]]
    assert sorted(bits) == list(range(8))
    a(f"s_bfe_u32 s{sPROB}, s{sWG}, {0x10000 | bits[7]:#x}")
    a(f"s_mul_i32 s{sT2}, s{sPROB}, 40")
    a(f"s_load_dwordx8 {sr(sP, 8)}, s[0:1], s{sT2}")
    a(f"s_load_dwordx2 {sr(sP + 8, 2)}, s[0:1], s{sT2} offset:32")
    a(f"s_load_dwordx2 {sr(sWS, 2)}, s[0:1], 96")
    if fused:
        a(f"s_load_dwordx4 {sr(sOD, 4)}, s[0:1], 80")
    a(f"s_bfe_u32 s{sHALF}, s{sWG}, {0x10000 | bits[0]:#x}")
    a(f"s_bfe_u32 s{sB}, s{sWG}, {0x10000 | bits[1]:#x}")
    a(f"s_mov_b32 s{sH}, 0")
    i = 0
    while i < 5:
        j = i
        while j + 1 < 5 and bits[2 + j + 1] == bits[2 + j] + 1:
            j += 1
        a(f"s_bfe_u32 s{sT3}, s{sWG}, {((j - i + 1) << 16) | bits[2 + i]:#x}")
        if i:
            a(f"s_lshl_b32 s{sT3}, s{sT3}, {i}")
        a(f"s_or_b32 s{sH}, s{sH}, s{sT3}")
        i = j + 1
    a(f"v_lshrrev_b32 v{vT0}, 6, v0")
    a(f"v_and_b32 v{vLANE}, 63, v0")
    a(f"v_readfirstlane_b32 s{sWAVE}, v{vT0}")
    a(f"s_mov_b32 s{sC}, {f32bits(C):#x}")
    a(f"s_mov_b32 s{sMASK}, 0xffff0000")
    a(f"s_mov_b32 s{sSELLO}, 0x05040100")
    a(f"s_mov_b32 s{sSELHI}, 0x07060302")
    a(f"s_movk_i32 s{sOFF4K}, 0x1000")
    a(f"v_lshrrev_b32 v{vT0}, 4, v0")
    a(f"v_and_b32 v{vT1}, 15, v0")
    a(f"v_lshlrev_b32 v{vT1}, 4, v{vT1}")
    a(f"v_lshl_add_u32 v{vT1}, v{vT0}, 17, v{vT1}")
    a(f"v_lshlrev_b32 v{vT2}, 5, v{vT0}")
    a(f"v_lshlrev_b32 v{vBASE}, 4, v{vLANE}")
    a(f"s_mul_i32 s{sT0}, s{sWAVE}, {tile_bytes}")
    a(f"v_add_u32 v{vBASE}, s{sT0}, v{vBASE}")
    if rot:
        a(f"s_mul_i32 s{sRK}, s{sWG}, {rot * step}")
        a(f"s_and_b32 s{sRK}, s{sRK}, 0xfffff")
        a(f"s_mov_b32 s{sRV}, s{sRK}")
        a(f"s_mov_b32 s{sIK}, 0")
        a(f"s_mov_b32 s{sIV}, 0")
        a(f"v_add_u32 v{vOK}, s{sRK}, v{vBASE}")
        a(f"v_add_u32 v{vOV}, s{sRK}, v{vBASE}")
    else:
        a(f"v_mov_b32 v{vOK}, v{vBASE}")
        a(f"v_mov_b32 v{vOV}, v{vBASE}")
    a(f"s_lshl_b32 s{sT0}, s{sB}, 26")
    a(f"s_lshl_b32 s{sT1}, s{sH}, 21")
    a(f"s_lshl_b32 s{sT2}, s{sHALF}, 20")
    a(f"s_add_u32 s{sT0}, s{sT0}, s{sT1}")
    a(f"s_add_u32 s{sT0}, s{sT0}, s{sT2}")
    a(f"s_lshl_b32 s{sT1}, s{sH}, 8")
    a(f"s_lshl_b32 s{sT2}, s{sB}, 10")
    a(f"s_lshl_b32 s{sT3}, s{sH}, 17")
    for r, nrec in ((sK, 1 << 20), (sV, 1 << 20), (sWQ, 0 if noq else 511 * 8192 + 256), (sWO, 0 if noq else 131072),
                    (sX, 1024), (sY, 32 * BLK)):
        a(f"s_mov_b32 s{r+2}, {nrec:#x}")
        a(f"s_mov_b32 s{r+3}, 0x00020000")
    a("s_waitcnt lgkmcnt(0)")
    stamp(1)
    a(f"s_add_u32 s{sX}, s{sP}, s{sT2}")
    a(f"s_addc_u32 s{sX+1}, s{sP+1}, 0")
    a(f"s_add_u32 s{sWQ}, s{sP+6}, s{sT1}")
    a(f"s_addc_u32 s{sWQ+1}, s{sP+7}, 0")
    a(f"buffer_load_dwordx4 {vr(vXP,4)}, v{vT2}, {sr(sX,4)}, 0 offen")
    a(f"buffer_load_dwordx4 {vr(vXP+4,4)}, v{vT2}, {sr(sX,4)}, 0 offen offset:16")
    a(f"s_mov_b32 s{sSO}, 0")
    for j in range(16):
        a(f"buffer_load_dwordx4 {vr(vBF+4*j,4)}, v{vT1}, {sr(sWQ,4)}, s{sSO} offen{wf}")
        if j < 15:
            a(f"s_add_u32 s{sSO}, s{sSO}, 0x2000")
    a(f"s_add_u32 s{sK}, s{sP+2}, s{sT0}")
    a(f"s_addc_u32 s{sK+1}, s{sP+3}, 0")
    a(f"s_add_u32 s{sV}, s{sP+4}, s{sT0}")
    a(f"s_addc_u32 s{sV+1}, s{sP+5}, 0")

    def issue(item):
        isv = item & 1
        srd, vo = (sV, vOV) if isv else (sK, vOK)
        base = slot(item)
        for j in range(n):
            so = "0" if j < 4 else f"s{sOFF4K}"
            assert j < 8
            a(f"buffer_load_dwordx4 {vr(base+4*j,4)}, v{vo}, {sr(srd,4)}, {so} offen offset:{(j%4)*1024}{kf}")
        if rot:
            sR, sI = (sRV, sIV) if isv else (sRK, sIK)
            a(f"s_add_u32 s{sR}, s{sR}, {step:#x}")
            a(f"s_and_b32 s{sR}, s{sR}, 0xfffff")
            a(f"s_add_u32 s{sI}, s{sI}, 1")
            a(f"s_cmp_lt_u32 s{sI}, {tiles}")
            a(f"s_cselect_b32 s{sRT}, s{sR}, 0x100000")
            a(f"v_add_u32 v{vo}, s{sRT}, v{vBASE}")
        else:
            a(f"v_add_u32 v{vo}, {step:#x}, v{vo}")

    for it in range(F):
        issue(it)
    a(f"s_add_u32 s{sWO}, s{sP+8}, s{sT3}")
    a(f"s_addc_u32 s{sWO+1}, s{sP+9}, 0")
    a(f"s_mov_b32 s{sY}, s{sWS}")
    a(f"s_mov_b32 s{sY+1}, s{sWS+1}")
    a(f"v_lshrrev_b32 v{vT0}, 3, v{vLANE}")
    a(f"v_lshlrev_b32 v{vT0}, 10, v{vT0}")
    a(f"v_and_b32 v{vT1}, 7, v{vLANE}")
    a(f"v_lshrrev_b32 v{vT2}, 3, v{vLANE}")
    a(f"v_and_b32 v{vT2}, 2, v{vT2}")
    a(f"v_xor_b32 v{vT1}, v{vT1}, v{vT2}")
    a(f"v_lshl_add_u32 v{vT0}, v{vT1}, 4, v{vT0}")
    a(f"s_lshl_b32 s{sT0}, s{sWAVE}, 7")
    a(f"v_add_u32 v{vWOE}, s{sT0}, v{vT0}")
    a(f"v_xor_b32 v{vWOO}, 64, v{vWOE}")
    a(f"s_lshl_b32 s{sM0N}, s{sWAVE}, 14")
    a(f"s_mov_b32 s{sSO}, 0")

    def wo_all():
        for q in range(16):
            a(f"s_mov_b32 m0, s{sM0N}")
            a(f"s_add_u32 s{sM0N}, s{sM0N}, 0x400")
            a(f"buffer_load_dwordx4 v{vWOE if q % 2 == 0 else vWOO}, {sr(sWO,4)}, s{sSO} offen{wf} lds")
            if q < 15:
                a(f"s_add_u32 s{sSO}, s{sSO}, 0x2000")
    if wo == "early":
        wo_all()
    a(f"v_mov_b32 v{vM}, 0xff7fffff")
    a(f"v_mov_b32 v{vL}, 0")
    for i in range(8):
        a(f"v_mov_b32 v{vACC+i}, 0")
    a(f"s_waitcnt vmcnt({F*n + (16 if wo == 'early' else 0)})")
    stamp(2)
    if wo == "late":
        wo_all()
    for i in range(8):
        for e in range(4):
            w0 = vBF + 4 * (2 * i) + e
            w1 = vBF + 4 * (2 * i + 1) + e
            a(f"v_perm_b32 v{vS + 2*e}, v{w1}, v{w0}, s{sSELLO}")
            a(f"v_perm_b32 v{vS + 2*e+1}, v{w1}, v{w0}, s{sSELHI}")
        for e in range(8):
            a(f"v_dot2c_f32_bf16 v{vACC+e}, v{vS+e}, v{vXP+i}")
    a("s_nop 2")

    def rowreduce8(acc, u0, u1):
        a(f"v_permlane32_swap_b32 v{acc+0}, v{acc+4}")
        a(f"v_permlane32_swap_b32 v{acc+2}, v{acc+6}")
        a(f"v_permlane32_swap_b32 v{acc+1}, v{acc+5}")
        a(f"v_permlane32_swap_b32 v{acc+3}, v{acc+7}")
        a(f"v_add_f32 v{acc+0}, v{acc+0}, v{acc+4}")
        a(f"v_add_f32 v{acc+2}, v{acc+2}, v{acc+6}")
        a(f"v_add_f32 v{acc+1}, v{acc+1}, v{acc+5}")
        a(f"v_add_f32 v{acc+3}, v{acc+3}, v{acc+7}")
        a("s_nop 1")
        a(f"v_permlane16_swap_b32 v{acc+0}, v{acc+2}")
        a(f"v_permlane16_swap_b32 v{acc+1}, v{acc+3}")
        a("s_nop 0")
        a(f"v_add_f32 v{u0}, v{acc+0}, v{acc+2}")
        a(f"v_add_f32 v{u1}, v{acc+1}, v{acc+3}")

    rowreduce8(vACC, vU, vU + 1)
    a(f"v_and_b32 v{vT0}, 15, v{vLANE}")
    a(f"v_lshrrev_b32 v{vT1}, 4, v{vLANE}")
    a(f"v_lshlrev_b32 v{vT0}, 5, v{vT0}")
    a(f"v_lshl_add_u32 v{vT0}, v{vT1}, 3, v{vT0}")
    a(f"v_add_u32 v{vT0}, {LDS_QW:#x}, v{vT0}")
    a(f"s_lshl_b32 s{sT0}, s{sWAVE}, 9")
    a(f"v_add_u32 v{vT1}, s{sT0}, v{vT0}")
    a(f"ds_write_b64 v{vT1}, {vr(vU,2)}")
    for i in range(8):
        a(f"v_mov_b32 v{vACC+i}, 0")
    a(f"v_lshrrev_b32 v{vA[1]}, 4, v{vLANE}")
    a(f"v_bfe_u32 v{vT1}, v{vLANE}, 2, 2")
    a(f"v_lshl_add_u32 v{vT1}, v{vA[1]}, 3, v{vT1}")
    a(f"v_lshlrev_b32 v{vT1}, 7, v{vT1}")
    a(f"v_bfe_u32 v{vT2}, v{vLANE}, 3, 2")
    a(f"v_lshl_add_u32 v{vT1}, v{vT2}, 5, v{vT1}")
    a(f"v_and_b32 v{vT2}, 3, v{vLANE}")
    a(f"v_lshl_add_u32 v{vT1}, v{vT2}, 3, v{vT1}")
    a(f"s_lshl_b32 s{sT0}, s{sWAVE}, 14")
    a(f"v_add_u32 v{vA[0]}, s{sT0}, v{vT1}")
    for t in range(1, 4):
        a(f"v_xor_b32 v{vA[t]}, {t<<5}, v{vA[0]}")
    a(f"s_mov_b32 s{sCNT}, 0")
    a("s_waitcnt lgkmcnt(0)")
    a("s_barrier")
    for w in range(8):
        a(f"ds_read_b64 {vr(vS+2*w,2)}, v{vT0} offset:{w*512}")
    a("s_waitcnt lgkmcnt(0)")
    for w in range(1, 8):
        a(f"v_add_f32 v{vS}, v{vS}, v{vS+2*w}")
        a(f"v_add_f32 v{vS+1}, v{vS+1}, v{vS+2*w+1}")
    a(f"v_cvt_pk_bf16_f32 v{vQ}, v{vS}, v{vS+1}")
    a("s_nop 0")
    a(f"v_mov_b32 v{vQ+1}, v{vQ}")
    a("s_nop 1")
    a(f"v_permlane16_swap_b32 v{vQ}, v{vQ+1}")
    a("s_nop 0")
    a(f"v_mov_b32 v{vQ+2}, v{vQ}")
    a(f"v_mov_b32 v{vQ+3}, v{vQ+1}")
    a("s_nop 1")
    a(f"v_permlane32_swap_b32 v{vQ}, v{vQ+2}")
    a(f"v_permlane32_swap_b32 v{vQ+1}, v{vQ+3}")
    stamp(3)

    def emit_loop(F, sfx):
        a.lines.append(".p2align 6")
        a.label(f"L_loop{sfx}")
        WAIT = (F - 1) * n
        t_bf = (F + 1) // 2 + 1 if wo != "spread" else 16 + (F + 1) // 2 + 1
        for it in range(U):
            R0 = slot(it)
            a(f"s_waitcnt vmcnt({WAIT})")
            if early:
                issue(it + F)
            if it % 2 == 0:
                for kk in range(4):
                    for j in range(n):
                        if kk == 0:
                            a(f"v_dot2_f32_bf16 v{S(j)}, v{R0+4*j}, v{vQ}, 0")
                        else:
                            a(f"v_dot2c_f32_bf16 v{S(j)}, v{R0+4*j+kk}, v{vQ+kk}")
                    if kk == 0 and n < 4:
                        a(f"s_nop {3 - n}")
                if not early:
                    issue(it + F)
                    gap = 2 * n
                else:
                    gap = n - 1
                if gap < 3:
                    a(f"s_nop {3 - gap - 1}")
                for st in (8, 4, 2, 1):
                    for j in range(n):
                        a(f"v_add_f32_dpp v{S(j)}, v{S(j)}, v{S(j)} row_ror:{st} row_mask:0xf bank_mask:0xf")
                    if n < 3 and st != 1:
                        a(f"s_nop {2 - n}")
                if n == 1:
                    a(f"v_max_f32 v{vMN}, v{S(0)}, v{vM}")
                else:
                    a(f"v_max3_f32 v{vMN}, v{S(0)}, v{S(1)}, v{vM}")
                for j in range(2, n - 1, 2):
                    a(f"v_max3_f32 v{vMN}, v{S(j)}, v{S(j+1)}, v{vMN}")
                if n > 1 and n % 2:
                    a(f"v_max_f32 v{vMN}, v{S(n-1)}, v{vMN}")
                a(f"v_mul_f32 v{vNMC}, s{sC}, v{vMN}")
                a(f"v_fma_f32 v{vAL}, v{vM}, s{sC}, -v{vNMC}")
                for j in range(n):
                    a(f"v_fma_f32 v{S(j)}, v{S(j)}, s{sC}, -v{vNMC}")
                a(f"v_exp_f32 v{vAL}, v{vAL}")
                for j in range(n):
                    a(f"v_exp_f32 v{S(j)}, v{S(j)}")
                a(f"v_mov_b32 v{vM}, v{vMN}")
                for i in range(0, 8, 2):
                    a(f"v_pk_mul_f32 {vr(vACC+i,2)}, {vr(vACC+i,2)}, {vr(vAL,2)} op_sel_hi:[1,0]")
                a(f"v_fma_f32 v{vL}, v{vL}, v{vAL}, v{S(0)}")
                for j in range(1, n):
                    a(f"v_add_f32 v{vL}, v{vL}, v{S(j)}")
                if it == 0:
                    tb = -(-t_bf // (U // 2)) * (U // 2)
                    assert tb < tiles
                    a(f"s_cmp_lg_u32 s{sCNT}, {tb}")
                    a(f"s_cbranch_scc1 L_nobf{sfx}")
                    for s in range(4):
                        for t in range(4):
                            for h in range(2):
                                a(f"ds_read_b64_tr_b16 {vr(vBF+16*s+4*t+2*h,2)}, v{vA[t]} offset:{4096*s+512*h}")
                    a.label(f"L_nobf{sfx}")
            else:
                for j in range(n):
                    for e in range(4):
                        a(f"v_lshlrev_b32 v{vU+2*e}, 16, v{R0+4*j+e}")
                        a(f"v_and_b32 v{vU+2*e+1}, s{sMASK}, v{R0+4*j+e}")
                    for e in range(4):
                        a(f"v_pk_fma_f32 {vr(vACC+2*e,2)}, {vr(vU+2*e,2)}, {vr(S(j),2)}, {vr(vACC+2*e,2)} op_sel_hi:[1,0,1]")
                if not early:
                    issue(it + F)
                if wo == "spread":
                    a(f"s_cmp_ge_u32 s{sSO}, 0x20000")
                    a(f"s_cbranch_scc1 L_nowo{it}")
                    a(f"s_mov_b32 m0, s{sM0N}")
                    a(f"s_add_u32 s{sM0N}, s{sM0N}, 0x400")
                    a(f"buffer_load_dwordx4 v{vWOE}, {sr(sWO,4)}, s{sSO} offen{wf} lds")
                    a(f"s_add_u32 s{sSO}, s{sSO}, 0x2000")
                    a(f"v_xor_b32 v{vWOE}, 64, v{vWOE}")
                    a.label(f"L_nowo{it}")
                a(f"s_add_u32 s{sCNT}, s{sCNT}, 1")
                if it == U - 1:
                    a(f"s_cmp_lt_u32 s{sCNT}, {tiles}")
                    a(f"s_cbranch_scc1 L_loop{sfx}")
                elif tiles % (U // 2):
                    a(f"s_cmp_ge_u32 s{sCNT}, {tiles}")
                    a("s_cbranch_scc1 L_done")

    if F2:
        a(f"s_and_b32 s{sT0}, s{sWG}, {f2mask}")
        a(f"s_cmp_lg_u32 s{sT0}, 0")
        a("s_cbranch_scc1 L_pre2")
        emit_loop(F, "a")
        a("s_branch L_done")
        a.label("L_pre2")
        for it in range(F, F2):
            issue(it)
        emit_loop(F2, "b")
    else:
        emit_loop(F, "")
    a.label("L_done")

    stamp(4)
    a(f"v_mul_f32 v{vM}, s{sC}, v{vM}")
    a("s_nop 0")
    a(f"v_mov_b32 v{vT0}, v{vM}")
    a(f"v_mov_b32 v{vT1}, v{vM}")
    a("s_nop 1")
    a(f"v_permlane32_swap_b32 v{vT0}, v{vT1}")
    a("s_nop 0")
    a(f"v_max_f32 v{vT0}, v{vT0}, v{vT1}")
    a("s_nop 0")
    a(f"v_mov_b32 v{vT1}, v{vT0}")
    a("s_nop 1")
    a(f"v_permlane16_swap_b32 v{vT0}, v{vT1}")
    a("s_nop 0")
    a(f"v_max_f32 v{vS}, v{vT0}, v{vT1}")
    a(f"v_sub_f32 v{vAL}, v{vM}, v{vS}")
    a(f"v_exp_f32 v{vAL}, v{vAL}")
    a("s_nop 0")
    a(f"v_mul_f32 v{vT0}, v{vAL}, v{vL}")
    for i in range(8):
        a(f"v_mul_f32 v{vACC+i}, v{vAL}, v{vACC+i}")
    a(f"v_mov_b32 v{vT1}, v{vT0}")
    a("s_nop 1")
    a(f"v_permlane32_swap_b32 v{vT0}, v{vT1}")
    rowreduce8(vACC, vU, vU + 1)
    a(f"v_add_f32 v{vT0}, v{vT0}, v{vT1}")
    a(f"v_cvt_pk_bf16_f32 v{vU+2}, v{vU}, v{vU+1}")
    a(f"v_mov_b32 v{vT1}, v{vT0}")
    a(f"v_lshlrev_b32 v{vU+4}, 16, v{vU+2}")
    a(f"v_and_b32 v{vU+5}, s{sMASK}, v{vU+2}")
    a(f"v_permlane16_swap_b32 v{vT0}, v{vT1}")
    a(f"v_sub_f32 v{vU+4}, v{vU}, v{vU+4}")
    a(f"v_sub_f32 v{vU+5}, v{vU+1}, v{vU+5}")
    a(f"v_add_f32 v{vS+1}, v{vT0}, v{vT1}")
    a(f"v_cvt_pk_bf16_f32 v{vU+3}, v{vU+4}, v{vU+5}")
    a(f"v_and_b32 v{vT0}, 15, v{vLANE}")
    a(f"v_lshrrev_b32 v{vT1}, 4, v{vLANE}")
    a(f"v_lshlrev_b32 v{vT2}, 4, v{vT0}")
    a(f"v_lshl_add_u32 v{vT2}, v{vT1}, 2, v{vT2}")
    a(f"s_mul_i32 s{sT0}, s{sWAVE}, {OA_STRIDE}")
    a(f"s_add_u32 s{sT0}, s{sT0}, {LDS_OA:#x}")
    a(f"v_add_u32 v{vT2}, s{sT0}, v{vT2}")
    a(f"ds_write_b32 v{vT2}, v{vU+2}")
    a(f"ds_write_b32 v{vT2}, v{vU+3} offset:{8*OA_STRIDE}")
    a(f"s_lshl_b32 s{sT0}, s{sWAVE}, 3")
    a(f"s_add_u32 s{sT0}, s{sT0}, {LDS_ML:#x}")
    a(f"v_mov_b32 v{vT2}, s{sT0}")
    a("s_mov_b64 exec, 1")
    a(f"ds_write_b64 v{vT2}, {vr(vS,2)}")
    a("s_mov_b64 exec, -1")
    a(f"v_mul_u32_u24 v{vT0}, {OA_STRIDE}, v{vT0}")
    a(f"v_lshl_add_u32 v{vT0}, v{vT1}, 4, v{vT0}")
    a(f"v_add_u32 v{vT0}, {LDS_OA:#x}, v{vT0}")
    a(f"v_and_b32 v{vT1}, 1, v{vT1}")
    a(f"v_lshlrev_b32 v{vT1}, 5, v{vT1}")
    a(f"v_add_u32 v{vT1}, {LDS_ML:#x}, v{vT1}")
    a(f"v_xor_b32 v{vT2}, 32, v{vT1}")
    a(f"s_lshl_b32 s{sT0}, s{sPROB}, 1")
    a(f"s_add_u32 s{sT0}, s{sT0}, s{sB}")
    a(f"s_lshl_b32 s{sT0}, s{sT0}, 3")
    a(f"s_add_u32 s{sT0}, s{sT0}, s{sWAVE}")
    a(f"s_mul_i32 s{sYOFF}, s{sT0}, {BLK}")
    a(f"s_lshl_b32 s{sT1}, s{sH}, 1")
    a(f"s_add_u32 s{sT1}, s{sT1}, s{sHALF}")
    a(f"s_and_b32 s{sT2}, s{sT1}, 15")
    a(f"s_lshl_b32 s{sT2}, s{sT2}, 2")
    a(f"s_lshr_b32 s{sT3}, s{sT1}, 4")
    a(f"s_add_u32 s{sT2}, s{sT2}, s{sT3}")
    a(f"s_lshl_b32 s{sT2}, s{sT2}, 8")
    a(f"s_add_u32 s{sT2}, s{sT2}, s{sYOFF}")
    a(f"s_lshl_b32 s{sT1}, s{sT1}, 3")
    a(f"s_add_u32 s{sT1}, s{sT1}, s{sYOFF}")
    a(f"s_add_u32 s{sT1}, s{sT1}, 0x4000")
    a("s_waitcnt vmcnt(0) lgkmcnt(0)")
    a("s_barrier")
    vE = vRING
    vAF = vE
    vML = vE + 16
    vD = vE + 32
    vSC = vE + 48
    for s in range(4):
        a(f"ds_read_b128 {vr(vAF+4*s,4)}, v{vT0} offset:{64*s}")
    a(f"ds_read_b128 {vr(vML,4)}, v{vT1}")
    a(f"ds_read_b128 {vr(vML+4,4)}, v{vT1} offset:16")
    a(f"ds_read_b128 {vr(vML+8,4)}, v{vT2}")
    a(f"ds_read_b128 {vr(vML+12,4)}, v{vT2} offset:16")
    for s in range(4):
        a(f"s_waitcnt lgkmcnt({7-s})")
        for t in range(4):
            c = "0" if s == 0 else vr(vD + 4 * t, 4)
            a(f"v_mfma_f32_16x16x32_bf16 {vr(vD+4*t,4)}, {vr(vAF+4*s,4)}, {vr(vBF+16*s+4*t,4)}, {c}")
    a("s_waitcnt lgkmcnt(0)")
    a(f"v_max3_f32 v{vMN}, v{vML}, v{vML+2}, v{vML+4}")
    a(f"v_max3_f32 v{vMN}, v{vML+6}, v{vML+8}, v{vMN}")
    a(f"v_max3_f32 v{vMN}, v{vML+10}, v{vML+12}, v{vMN}")
    a(f"v_max_f32 v{vS}, v{vML+14}, v{vMN}")
    for r in range(8):
        a(f"v_sub_f32 v{vSC+r}, v{vML+2*r}, v{vS}")
    for r in range(8):
        a(f"v_exp_f32 v{vSC+r}, v{vSC+r}")
    a(f"v_mul_f32 v{vS+1}, v{vSC}, v{vML+1}")
    for r in range(1, 8):
        a(f"v_fmac_f32 v{vS+1}, v{vSC+r}, v{vML+2*r+1}")
    a(f"v_lshlrev_b32 v{vT0}, 2, v{vLANE}")
    for t in range(4):
        a(f"v_mul_f32 v{vU+t}, v{vSC}, v{vD+4*t}")
    for r in range(1, 4):
        for t in range(4):
            a(f"v_fmac_f32 v{vU+t}, v{vSC+r}, v{vD+4*t+r}")
    a("s_nop 0")
    a(f"v_permlane32_swap_b32 v{vU}, v{vU+2}")
    a(f"v_permlane32_swap_b32 v{vU+1}, v{vU+3}")
    a("s_nop 0")
    a(f"v_add_f32 v{vU}, v{vU}, v{vU+2}")
    a(f"v_add_f32 v{vU+1}, v{vU+1}, v{vU+3}")
    a("s_nop 1")
    a(f"v_permlane16_swap_b32 v{vU}, v{vU+1}")
    a("s_nop 0")
    a(f"v_add_f32 v{vU}, v{vU}, v{vU+1}")
    a(f"buffer_store_dword v{vU}, v{vT0}, {sr(sY,4)}, s{sT2} offen{scf}")
    a("s_mov_b64 exec, 1")
    a(f"buffer_store_dwordx2 {vr(vS,2)}, v{vT0}, {sr(sY,4)}, s{sT1} offen{scf}")
    if fused:
        a("s_mov_b64 exec, -1")
        a(f"s_mov_b32 s84, s{sOD}")
        a(f"s_mov_b32 s85, s{sOD+1}")
        a("s_movk_i32 s86, 0x1000")
        a("s_mov_b32 s87, 0x00020000")
        a(f"s_mov_b32 s88, s{sOD+2}")
        a(f"s_mov_b32 s89, s{sOD+3}")
        a("s_movk_i32 s90, 0x100")
        a("s_mov_b32 s91, 0x00020000")
        a(f"s_lshl_b32 s{sT0}, s{sPROB}, 1")
        a(f"s_add_u32 s{sT0}, s{sT0}, s{sB}")
        a(f"s_lshl_b32 s{sT0}, s{sT0}, 6")
        a(f"v_mov_b32 v{vT1}, 1")
        a(f"v_mov_b32 v{vT2}, {LDS_ML:#x}")
        a(f"s_add_u32 s92, s{sYOFF}, 0x1000")
        a(f"s_add_u32 s93, s{sYOFF}, 0x2000")
        a(f"s_add_u32 s94, s{sYOFF}, 0x3000")
        a(f"s_add_u32 s95, s{sYOFF}, 0x4000")
        a("s_waitcnt vmcnt(0)")
        a("s_barrier")
        a(f"s_cmp_lg_u32 s{sWAVE}, 0")
        a("s_cbranch_scc1 L_noatom")
        a("s_mov_b64 exec, 1")
        a(f"buffer_atomic_add v{vT1}, v{vT0}, s[88:91], s{sT0} offen sc0 sc1")
        a("s_waitcnt vmcnt(0)")
        a(f"ds_write_b32 v{vT2}, v{vT1}")
        a("s_mov_b64 exec, -1")
        a("s_waitcnt lgkmcnt(0)")
        a.label("L_noatom")
        a("s_barrier")
        a(f"ds_read_b32 v{vT1}, v{vT2}")
        vY = vBF
        vRM = vE
        vRA = vE + 4
        vW = vE + 8
        vO1 = vE + 9
        vO2 = vE + 10
        a(f"v_lshlrev_b32 v{vO1}, 4, v{vLANE}")
        a(f"v_lshrrev_b32 v{vO2}, 1, v{vLANE}")
        a(f"v_lshlrev_b32 v{vO2}, 4, v{vO2}")
        a("s_waitcnt lgkmcnt(0)")
        a(f"v_readfirstlane_b32 s{sT0}, v{vT1}")
        a("s_nop 3")
        a(f"s_cmp_lg_u32 s{sT0}, 63")
        a("s_cbranch_scc1 L_fin")
        a(f"buffer_load_dwordx4 {vr(vRM,4)}, v{vO2}, {sr(sY,4)}, s95 offen{scf}")
        for i in range(16):
            so = f"s{sYOFF}" if i < 4 else f"s{91 + i // 4}"
            a(f"buffer_load_dwordx4 {vr(vY+4*i,4)}, v{vO1}, {sr(sY,4)}, {so} offen offset:{(i%4)*1024}{scf}")
        a(f"s_lshl_b32 s{sT0}, s{sB}, 11")
        a(f"s_lshl_b32 s{sT1}, s{sPROB}, 10")
        a(f"s_add_u32 s{sT0}, s{sT0}, s{sT1}")
        a(f"s_lshl_b32 s{sT1}, s{sWAVE}, 7")
        a(f"s_add_u32 s{sT0}, s{sT0}, s{sT1}")
        a(f"v_and_b32 v{vT1}, 15, v{vLANE}")
        a(f"v_lshrrev_b32 v{vT2}, 4, v{vLANE}")
        a(f"v_lshl_add_u32 v{vO1}, v{vT1}, 2, v{vT2}")
        a(f"v_lshlrev_b32 v{vO1}, 1, v{vO1}")
        a(f"v_and_b32 v{vT1}, 1, v{vLANE}")
        a(f"v_cmp_eq_u32 vcc, 1, v{vT1}")
        a("s_waitcnt vmcnt(16)")
        a(f"v_max_f32 v{vT1}, v{vRM}, v{vRM+2}")
        a(f"v_sub_f32 v{vRM}, v{vRM}, v{vT1}")
        a(f"v_sub_f32 v{vRM+2}, v{vRM+2}, v{vT1}")
        a(f"v_exp_f32 v{vRM}, v{vRM}")
        a(f"v_exp_f32 v{vRM+2}, v{vRM+2}")
        a("s_nop 0")
        a(f"v_mul_f32 v{vT1}, v{vRM}, v{vRM+1}")
        a(f"v_fmac_f32 v{vT1}, v{vRM+2}, v{vRM+3}")
        a(f"v_rcp_f32 v{vT1}, v{vT1}")
        a(f"v_cndmask_b32 v{vW}, v{vRM}, v{vRM+2}, vcc")
        a(f"v_mul_f32 v{vW}, v{vW}, v{vT1}")
        for e in range(4):
            a(f"v_mov_b32 v{vRA+e}, 0")
        for i in range(16):
            a(f"s_waitcnt vmcnt({15-i})")
            for e in range(4):
                a(f"v_fmac_f32_dpp v{vRA+e}, v{vW}, v{vY+4*i+e} row_newbcast:{i} row_mask:0xf bank_mask:0xf")
        a("s_nop 1")
        a(f"v_permlane32_swap_b32 v{vRA}, v{vRA+2}")
        a(f"v_permlane32_swap_b32 v{vRA+1}, v{vRA+3}")
        a("s_nop 0")
        a(f"v_add_f32 v{vRA}, v{vRA}, v{vRA+2}")
        a(f"v_add_f32 v{vRA+1}, v{vRA+1}, v{vRA+3}")
        a("s_nop 1")
        a(f"v_permlane16_swap_b32 v{vRA}, v{vRA+1}")
        a("s_nop 0")
        a(f"v_add_f32 v{vRA}, v{vRA}, v{vRA+1}")
        a(f"v_cvt_pk_bf16_f32 v{vRA}, v{vRA}, v{vRA}")
        a(f"buffer_store_short v{vRA}, v{vO1}, s[84:87], s{sT0} offen")
        if probe:
            pa, pb_, pk_ = probe
            a("s_waitcnt vmcnt(0)")
            stamp(5)
            a("s_waitcnt lgkmcnt(0)")
            a(f"s_sub_u32 s{sT0}, s{sST+2*pb_}, s{sST+2*pa}")
            a(f"s_mul_i32 s{sT0}, s{sT0}, {pk_}")
            a(f"s_add_u32 s{sT0}, s{sT0}, s{sST+10}")
            a.label("L_probe")
            a(f"s_memrealtime {sr(sST,2)}")
            a("s_waitcnt lgkmcnt(0)")
            a(f"s_sub_u32 s{sT1}, s{sST}, s{sT0}")
            a(f"s_cmp_lt_i32 s{sT1}, 0")
            a("s_cbranch_scc1 L_probe")
        a.label("L_fin")
        a("s_mov_b64 exec, 1")
    if diag:
        a("s_waitcnt vmcnt(0)")
        stamp(5)
        a(f"s_add_u32 s76, s{sWS}, 0x400000")
        a(f"s_addc_u32 s77, s{sWS+1}, 0")
        a("s_mov_b32 s78, 0x100000")
        a("s_mov_b32 s79, 0x00020000")
        a(f"s_lshl_b32 s{sT0}, s{sWG}, 3")
        a(f"s_add_u32 s{sT0}, s{sT0}, s{sWAVE}")
        a(f"s_lshl_b32 s{sT0}, s{sT0}, 5")
        a(f"s_getreg_b32 s{sT1}, hwreg(HW_REG_XCC_ID)")
        a(f"s_getreg_b32 s{sT2}, hwreg(HW_REG_HW_ID)")
        a("s_waitcnt lgkmcnt(0)")
        for i in range(6):
            a(f"v_mov_b32 v{vACC+i}, s{sST+2*i}")
        a(f"v_mov_b32 v{vACC+6}, s{sT1}")
        a(f"v_mov_b32 v{vACC+7}, s{sT2}")
        a(f"buffer_store_dwordx4 {vr(vACC,4)}, v{vT0}, s[76:79], s{sT0} offen")
        a(f"buffer_store_dwordx4 {vr(vACC+4,4)}, v{vT0}, s[76:79], s{sT0} offen offset:16")
    a.label("L_attn_end")
    a("s_endpgm")
    return a, NSGPR


def build(**kw):
    a1, s1 = gen_attn(**kw)
    k1 = NAME + "_kernel"
    out = HEADER
    if kw.get("tail") == "fused":
        out += f"; @launch grid=(256,1,1) block=(512,1,1) lds={LDS_TOTAL}\n"
        out += '.amdgcn_target "amdgcn-amd-amdhsa--gfx950"\n.text\n'
        out += f".globl {k1}\n.p2align 8\n.type {k1},@function\n" + a1.text()
        out += '.section .rodata,"a"\n.p2align 6\n' + kd(k1, a1, s1)
        return out
    a2, s2 = gen_reduce(kw.get("diag", False))
    out += f"; @launch kernel={k1} grid=(256,1,1) block=(512,1,1) lds={LDS_TOTAL}\n"
    out += "; @launch kernel=reduce_kernel grid=(32,1,1) block=(64,1,1) lds=0\n"
    out += '.amdgcn_target "amdgcn-amd-amdhsa--gfx950"\n.text\n'
    out += f".globl {k1}\n.p2align 8\n.type {k1},@function\n" + a1.text()
    out += ".globl reduce_kernel\n.p2align 8\n.type reduce_kernel,@function\n" + a2.text()
    out += '.section .rodata,"a"\n.p2align 6\n' + kd(k1, a1, s1) + ".p2align 6\n" + kd("reduce_kernel", a2, s2)
    return out


if __name__ == "__main__":
    import argparse
    ap = argparse.ArgumentParser()
    ap.add_argument("-o", default=f"cdna_kernels/{NAME}.s")
    ap.add_argument("--n", type=int, default=2)
    ap.add_argument("--F", type=int, default=2)
    ap.add_argument("--early", action="store_true")
    ap.add_argument("--kv", default="nt")
    ap.add_argument("--wf", default="nt")
    ap.add_argument("--diag", action="store_true")
    ap.add_argument("--wo", default="early")
    ap.add_argument("--map", default="xcd2")
    ap.add_argument("--noq", action="store_true")
    ap.add_argument("--rot", type=int, default=0)
    ap.add_argument("--tail", default="k2")
    ap.add_argument("--F2", type=int, default=0)
    ap.add_argument("--f2mask", type=int, default=1)
    ap.add_argument("--probe", default=None)
    ap.add_argument("--sc", default="sc1")
    args = ap.parse_args()
    open(args.o, "w").write(build(n=args.n, F=args.F, early=args.early, kvflags=args.kv, wflags=args.wf,
                                  diag=args.diag, wo=args.wo, wmap=args.map, noq=args.noq, rot=args.rot, tail=args.tail, sc=args.sc, F2=args.F2, f2mask=args.f2mask,
                                  probe=tuple(int(x) for x in args.probe.split(",")) if args.probe else None))
```

```python
import re, struct


def f32bits(x):
    return struct.unpack("<I", struct.pack("<f", x))[0]


def vr(b, n):
    return f"v[{b}:{b+n-1}]"


def sr(b, n):
    return f"s[{b}:{b+n-1}]"


_REG = re.compile(r"^-?(?:abs\()?([vs])(?:(\d+)|\[(\d+):(\d+)\])\)?$")
TRANS = ("v_exp_f32", "v_rcp_f32", "v_log_f32", "v_rsq_f32", "v_sqrt_f32")


def regs(tok):
    tok = tok.strip()
    if tok == "vcc":
        return [("s", 106), ("s", 107)]
    if tok == "m0":
        return [("s", 124)]
    if tok == "exec":
        return [("s", 126), ("s", 127)]
    m = _REG.match(tok)
    if not m:
        return []
    if m.group(2) is not None:
        return [(m.group(1), int(m.group(2)))]
    return [(m.group(1), i) for i in range(int(m.group(3)), int(m.group(4)) + 1)]


class Asm:
    def __init__(self):
        self.lines = []
        self.nv = 0
        self.maxv = 0
        self.pos = 0
        self.w = {}
        self.storedata = {}
        self.mfma_c = {}

    def valloc(self, n=1, align=1):
        self.nv = (self.nv + align - 1) // align * align
        r = self.nv
        self.nv += n
        self.maxv = max(self.maxv, self.nv)
        return r

    def label(self, s):
        self.lines.append(s + ":")

    def raw(self, s):
        self.lines.append(s)

    def comment(self, s):
        self.lines.append("    ; " + s)

    def text(self):
        return "\n".join(self.lines) + "\n"

    def nop(self, states):
        while states > 0:
            k = min(states, 16)
            self.lines.append(f"    s_nop {k-1}")
            self.pos += k
            states -= k

    def __call__(self, s):
        op, _, rest = s.partition(" ")
        toks = [t for t in re.split(r",\s*|\s+", rest.strip()) if t]
        ops = [regs(t) for t in toks]
        is_valu = op.startswith("v_")
        is_mfma = op.startswith("v_mfma")
        is_dot = op.startswith("v_dot")
        is_dpp = "row_" in s or "quad_perm" in s
        is_perm = op.startswith("v_permlane")
        is_rl = op in ("v_readfirstlane_b32", "v_readlane_b32")
        is_vmem = op.startswith(("buffer_", "global_"))
        is_ds = op.startswith("ds_")
        is_lds_dma = is_vmem and toks and toks[-1] == "lds"
        is_store = is_vmem and ("store" in op or "atomic" in op)
        writes, reads = [], []
        if is_valu:
            writes = ops[0]
            reads = [r for o in ops[1:] for r in o]
            if is_perm:
                writes = ops[0] + ops[1]
                reads = ops[0] + ops[1]
            if op.startswith(("v_fmac", "v_dot2c")) or is_dpp:
                reads = reads + ops[0]
            if op.startswith("v_cmp"):
                pass
            if op.startswith("v_cndmask") and len(toks) == 3:
                reads += regs("vcc")
        elif is_vmem:
            if is_store or is_lds_dma:
                reads = [r for o in ops for r in o]
                if "atomic" in op and "sc0" in toks:
                    writes = ops[0]
            else:
                writes = ops[0]
                reads = [r for o in ops[1:] for r in o]
            if is_lds_dma:
                reads += regs("m0")
        elif is_ds:
            if op.startswith("ds_read") or "_rtn" in op:
                writes = ops[0]
                reads = [r for o in ops[1:] for r in o]
            else:
                reads = [r for o in ops for r in o]
        elif op.startswith("s_") and not op.startswith(("s_cmp", "s_waitcnt", "s_nop", "s_barrier", "s_cbranch", "s_branch", "s_endpgm", "s_sleep", "s_setprio")):
            writes = ops[0] if ops else []
            reads = [r for o in ops[1:] for r in o]
        elif op.startswith("s_cmp"):
            reads = [r for o in ops for r in o]
        need = 0

        def req(r, n):
            nonlocal need
            p = self.w[r][0]
            need = max(need, n - (self.pos - p - 1))

        for r in set(reads) | set(writes):
            if r not in self.w:
                continue
            kind, wop = self.w[r][1], self.w[r][2]
            rd = r in reads
            if r[0] == "v":
                if kind in ("valu", "trans", "dot") and rd:
                    if is_dpp and ops[1] and r in ops[1]:
                        req(r, 2)
                    if is_perm:
                        req(r, 2)
                    if is_rl:
                        req(r, 1)
                    if is_mfma:
                        req(r, 2)
                if kind == "trans" and rd and is_valu and not op.startswith(TRANS):
                    req(r, 1)
                if kind == "dot" and (is_valu or is_vmem or is_ds):
                    same_c = op == wop and r in ops[0] and (op.startswith("v_dot2c") or (len(ops) > 3 and r in ops[3])) \
                        and r not in ops[1] and r not in ops[2]
                    if not same_c:
                        req(r, 3)
                if kind == "mfma":
                    if is_mfma and len(ops) > 3 and r in ops[3] and ops[3] == ops[0] and r not in ops[1] and r not in ops[2]:
                        pass
                    else:
                        req(r, 8)
            else:
                if kind in ("valu", "trans") and rd:
                    if is_valu:
                        req(r, 2)
                    if is_vmem:
                        req(r, 5)
                    if op.startswith("s_"):
                        req(r, 1)
                if kind == "salu" and r == ("s", 124) and is_lds_dma:
                    req(r, 1)
        if is_valu:
            for r in writes:
                if r in self.storedata:
                    need = max(need, 2 - (self.pos - self.storedata[r] - 1))
                if r in self.mfma_c and not is_mfma:
                    need = max(need, 3 - (self.pos - self.mfma_c[r] - 1))
        if need > 0:
            self.nop(need)
        self.lines.append("    " + s)
        kind = "mfma" if is_mfma else "dot" if is_dot else "trans" if op.startswith(TRANS) else "valu" if is_valu else \
            "mem" if (is_vmem or is_ds) else "salu"
        for r in writes:
            self.w[r] = (self.pos, kind, op)
        if is_store and ("x4" in op or "x3" in op):
            for r in ops[0]:
                self.storedata[r] = self.pos
        if is_mfma and len(ops) > 3:
            for r in ops[3]:
                self.mfma_c[r] = self.pos
        if op == "s_nop":
            self.pos += int(toks[0]) + 1
        else:
            self.pos += 1


def kd(name, a, nsgpr):
    nv = a.maxv
    return f""".amdhsa_kernel {name}
  .amdhsa_next_free_vgpr {nv}
  .amdhsa_next_free_sgpr {nsgpr}
  .amdhsa_accum_offset {(nv + 3) // 4 * 4}
  .amdhsa_group_segment_fixed_size 0
  .amdhsa_kernarg_size 104
  .amdhsa_user_sgpr_count 2
  .amdhsa_user_sgpr_kernarg_segment_ptr 1
  .amdhsa_system_sgpr_workgroup_id_x 1
.end_amdhsa_kernel
"""
```

```python
import math
from gen import HEADER, NAME
from asmlib import Asm, vr, sr, f32bits, kd

BLK = 128 * 256 + 128 * 8
LDS_QW = 131072
LDS_OA = LDS_QW + 8192
OA_STRIDE = 272
OA_SIZE = 16 * OA_STRIDE
LDS_ML = LDS_OA + 2 * OA_SIZE
LDS_TOTAL = LDS_ML + 128
KEYLANE = [4 * [0, 2, 1, 3][k & 3] + 2 * (k >> 2) for k in range(8)]


class Sim:
    def __init__(self):
        self.order = {}
        self.n = 0
        self.N = {}

    def ins(self, s): pass
    def label(self, s): pass
    def raw(self, s): pass

    def issue(self, s, key=None):
        self.order[key] = self.n
        self.n += 1

    def wait(self, site, key):
        n = self.n - 1 - self.order[key]
        self.N[site] = min(self.N.get(site, 63), n)


class Emit:
    def __init__(self, a, N):
        self.a, self.N = a, N

    def ins(self, s): self.a(s)
    def label(self, s): self.a.label(s)
    def raw(self, s): self.a.raw(s)
    def issue(self, s, key=None): self.a(s)
    def wait(self, site, key): self.a(f"s_waitcnt vmcnt({self.N[site]})")


def gen_attn(F=4, kvflags="nt", wflags="nt", diag=False, wmap="p67501234", noq=False, nboost=2, pbar=False, F0=8):
    a = Asm()
    C = (128.0 ** -0.5) * math.log2(math.e)
    kf = (" " + kvflags) if kvflags else ""
    wf = (" " + wflags) if wflags else ""
    assert 2 <= F <= 7 and 1 <= nboost <= 7

    sWG, sWAVE = 2, 3
    sP = 4
    sWS = 24
    sPF, sWQ, sX, sWO, sY = 28, 32, 36, 40, 44
    sNX = 48
    sVC = 52
    sKN = 54
    sVB = 58
    sT0, sT1, sT2, sT3 = 60, 61, 62, 63
    sC, sMASK, sSELLO, sSELHI, sCNT, sPO = 64, 65, 66, 67, 68, 69
    sH, sB, sQD, sPROB = 70, 71, 72, 73
    sSO, sM0N, sYO, sMO = 74, 75, 76, 77
    sCM = 78
    NSGPR = 80
    sST = 80
    if diag:
        NSGPR = 100

    def stamp(e, i):
        if diag:
            e.ins(f"s_memrealtime {sr(sST+2*i,2)}")

    a.valloc(1)
    vLANE = a.valloc()
    vPO = a.valloc()
    vT0, vT1, vT2 = a.valloc(), a.valloc(), a.valloc()
    vM, vL = a.valloc(), a.valloc()
    vWOE, vWOO = a.valloc(), a.valloc()
    vWQ0, vWQ1, vXO = a.valloc(), a.valloc(), a.valloc()
    vXP = a.valloc()
    vA = [a.valloc() for _ in range(4)]
    vQWA, vQRA, vOWA, vAFA, vMLA, vMLB, vMWA, vL4 = [a.valloc() for _ in range(8)]
    vP = a.valloc(2, 2)
    vQ = a.valloc(4, 4)
    vACC = a.valloc(8, 4)
    vQA = a.valloc(8, 4)
    vS = a.valloc(16, 4)
    vSC = a.valloc(8, 4)
    vU = a.valloc(8, 4)
    vW = a.valloc(8, 4)
    vBF = a.valloc(64, 4)
    vRING = a.valloc(32, 4)
    vAF = a.valloc(16, 4)
    vML = a.valloc(16, 4)
    vD = a.valloc(16, 4)
    vSL = a.valloc(8, 4)
    slot = lambda g: vRING + 4 * (g % 8)

    def ring_issue(e, g, first=False):
        if g % 4 == 0 and not first:
            e.ins(f"s_add_u32 s{sPO}, s{sPO}, 0x8000")
            if g % 8 == 0:
                e.ins(f"s_cmp_eq_u32 s{sPO}, 0x80000")
                e.ins(f"s_cselect_b32 s{sPF}, s{sNX}, s{sPF}")
                e.ins(f"s_cselect_b32 s{sPF+1}, s{sNX+1}, s{sPF+1}")
                e.ins(f"s_cselect_b32 s{sPF+2}, s{sNX+2}, s{sPF+2}")
                e.ins(f"s_cselect_b32 s{sPO}, 0, s{sPO}")
        e.issue(f"buffer_load_dwordx4 {vr(slot(g),4)}, v{vPO}, {sr(sPF,4)}, s{sPO} offen offset:{(g%4)*1024}{kf}", ("r", g))

    def rowreduce8(e, acc, u0, u1):
        for x, y in ((0, 4), (2, 6), (1, 5), (3, 7)):
            e.ins(f"v_permlane32_swap_b32 v{acc+x}, v{acc+y}")
        for x, y in ((0, 4), (2, 6), (1, 5), (3, 7)):
            e.ins(f"v_add_f32 v{acc+x}, v{acc+x}, v{acc+y}")
        e.ins(f"v_permlane16_swap_b32 v{acc+0}, v{acc+2}")
        e.ins(f"v_permlane16_swap_b32 v{acc+1}, v{acc+3}")
        e.ins(f"v_add_f32 v{u0}, v{acc+0}, v{acc+2}")
        e.ins(f"v_add_f32 v{u1}, v{acc+1}, v{acc+3}")

    def wave_allreduce(e, op, x, t):
        e.ins(f"v_mov_b32 v{t}, v{x}")
        e.ins(f"v_permlane32_swap_b32 v{x}, v{t}")
        e.ins(f"{op} v{x}, v{x}, v{t}")
        e.ins(f"v_mov_b32 v{t}, v{x}")
        e.ins(f"v_permlane16_swap_b32 v{x}, v{t}")
        e.ins(f"{op} v{x}, v{x}, v{t}")

    def q_final(e):
        for w in range(1, 8):
            e.ins(f"v_add_f32 v{vS}, v{vS}, v{vS+2*w}")
            e.ins(f"v_add_f32 v{vS+1}, v{vS+1}, v{vS+2*w+1}")
        e.ins(f"v_cvt_pk_bf16_f32 v{vQ}, v{vS}, v{vS+1}")
        e.ins(f"v_mov_b32 v{vQ+1}, v{vQ}")
        e.ins(f"v_permlane16_swap_b32 v{vQ}, v{vQ+1}")
        e.ins(f"v_mov_b32 v{vQ+2}, v{vQ}")
        e.ins(f"v_mov_b32 v{vQ+3}, v{vQ+1}")
        e.ins(f"v_permlane32_swap_b32 v{vQ}, v{vQ+2}")
        e.ins(f"v_permlane32_swap_b32 v{vQ+1}, v{vQ+3}")

    def qpair(e, w0, w1, xp, acc):
        for k in range(4):
            e.ins(f"v_perm_b32 v{vU+2*k}, v{w1+k}, v{w0+k}, s{sSELLO}")
            e.ins(f"v_perm_b32 v{vU+2*k+1}, v{w1+k}, v{w0+k}, s{sSELHI}")
        for k in range(8):
            e.ins(f"v_dot2c_f32_bf16 v{acc+k}, v{vU+k}, v{xp}")

    def wqn_issue(e, key):
        e.issue(f"buffer_load_dwordx4 {vr(vW,4)}, v{vWQ0}, {sr(sWQ,4)}, 0 offen{wf}", None)
        e.issue(f"buffer_load_dwordx4 {vr(vW+4,4)}, v{vWQ1}, {sr(sWQ,4)}, 0 offen{wf}", None)
        e.issue(f"buffer_load_dword v{vXP}, v{vXO}, {sr(sX,4)}, 0 offen", key)
        e.ins(f"v_add_u32 v{vWQ0}, 0x4000, v{vWQ0}")
        e.ins(f"v_add_u32 v{vWQ1}, 0x4000, v{vWQ1}")
        e.ins(f"v_add_u32 v{vXO}, 4, v{vXO}")

    bits = [int(c) for c in wmap[1:]]
    assert sorted(bits) == list(range(8))

    def field(e, dst, bl):
        i = 0
        first = True
        while i < len(bl):
            j = i
            while j + 1 < len(bl) and bl[j + 1] == bl[j] + 1:
                j += 1
            t = dst if first else sT3
            e.ins(f"s_bfe_u32 s{t}, s{sWG}, {((j - i + 1) << 16) | bl[i]:#x}")
            if i:
                e.ins(f"s_lshl_b32 s{t}, s{t}, {i}")
            if not first:
                e.ins(f"s_or_b32 s{dst}, s{dst}, s{sT3}")
            first = False
            i = j + 1

    def b_prologue(e):
        e.label(NAME + "_kernel")
        e.ins(f"s_cmp_ge_u32 s{sWG}, 256")
        e.ins("s_cbranch_scc1 L_attn_end")
        stamp(e, 0)
        e.ins(f"s_load_dwordx16 {sr(sP,16)}, s[0:1], 0")
        e.ins(f"s_load_dwordx4 {sr(sP+16,4)}, s[0:1], 64")
        e.ins(f"s_load_dwordx2 {sr(sWS,2)}, s[0:1], 96")
        field(e, sQD, bits[0:2])
        field(e, sB, bits[2:3])
        field(e, sH, bits[3:8])
        e.ins(f"v_lshrrev_b32 v{vT0}, 6, v0")
        e.ins(f"v_and_b32 v{vLANE}, 63, v0")
        e.ins(f"v_readfirstlane_b32 s{sWAVE}, v{vT0}")
        e.ins(f"v_lshrrev_b32 v{vT0}, 4, v0")
        e.ins(f"v_and_b32 v{vT1}, 15, v0")
        e.ins(f"v_lshlrev_b32 v{vT1}, 4, v{vT1}")
        e.ins(f"v_lshl_add_u32 v{vWQ0}, v{vT0}, 17, v{vT1}")
        e.ins(f"v_lshlrev_b32 v{vXO}, 5, v{vT0}")
        e.ins(f"v_lshlrev_b32 v{vPO}, 4, v{vLANE}")
        e.ins(f"s_lshl_b32 s{sT0}, s{sWAVE}, 12")
        e.ins(f"v_add_u32 v{vPO}, s{sT0}, v{vPO}")
        e.ins(f"s_lshl_b32 s{sT0}, s{sB}, 26")
        e.ins(f"s_lshl_b32 s{sT1}, s{sH}, 21")
        e.ins(f"s_lshl_b32 s{sT2}, s{sQD}, 19")
        e.ins(f"s_add_u32 s{sT0}, s{sT0}, s{sT1}")
        e.ins(f"s_add_u32 s{sT0}, s{sT0}, s{sT2}")
        e.ins(f"s_lshl_b32 s{sT1}, s{sH}, 8")
        e.ins(f"s_lshl_b32 s{sT2}, s{sB}, 10")
        e.ins(f"s_lshl_b32 s{sT3}, s{sH}, 17")
        for r, nrec in ((sPF, 1 << 19), (sWQ, 0 if noq else 511 * 8192 + 256), (sWO, 0 if noq else 131072),
                        (sX, 1024), (sY, 32 * BLK)):
            e.ins(f"s_mov_b32 s{r+2}, {nrec:#x}")
            e.ins(f"s_mov_b32 s{r+3}, 0x00020000")
        e.ins(f"s_mov_b32 s{sSO}, 0")
        e.ins(f"s_mov_b32 s{sPO}, 0")
        e.ins("s_waitcnt lgkmcnt(0)")
        stamp(e, 1)
        e.ins(f"s_add_u32 s{sX}, s{sP}, s{sT2}")
        e.ins(f"s_addc_u32 s{sX+1}, s{sP+1}, 0")
        e.ins(f"s_add_u32 s{sWQ}, s{sP+6}, s{sT1}")
        e.ins(f"s_addc_u32 s{sWQ+1}, s{sP+7}, 0")
        e.issue(f"buffer_load_dwordx4 {vr(vW,4)}, v{vXO}, {sr(sX,4)}, 0 offen")
        e.issue(f"buffer_load_dwordx4 {vr(vW+4,4)}, v{vXO}, {sr(sX,4)}, 0 offen offset:16")
        for j in range(16):
            e.issue(f"buffer_load_dwordx4 {vr(vBF+4*j,4)}, v{vWQ0}, {sr(sWQ,4)}, s{sSO} offen{wf}", ("wq", j))
            if j < 15:
                e.ins(f"s_add_u32 s{sSO}, s{sSO}, 0x2000")
        e.ins(f"s_add_u32 s{sPF}, s{sP+2}, s{sT0}")
        e.ins(f"s_addc_u32 s{sPF+1}, s{sP+3}, 0")
        if pbar:
            e.ins("s_barrier")
        for g in range(F0):
            ring_issue(e, g, first=(g == 0))
        e.ins(f"s_add_u32 s{sNX}, s{sP+4}, s{sT0}")
        e.ins(f"s_addc_u32 s{sNX+1}, s{sP+5}, 0")
        e.ins(f"s_mov_b32 s{sNX+2}, 0x80000")
        e.ins(f"s_add_u32 s{sKN}, s{sP+12}, s{sT0}")
        e.ins(f"s_addc_u32 s{sKN+1}, s{sP+13}, 0")
        e.ins(f"s_mov_b32 s{sKN+2}, 0x80000")
        e.ins(f"s_add_u32 s{sVB}, s{sP+14}, s{sT0}")
        e.ins(f"s_addc_u32 s{sVB+1}, s{sP+15}, 0")
        e.ins(f"s_add_u32 s{sWO}, s{sP+8}, s{sT3}")
        e.ins(f"s_addc_u32 s{sWO+1}, s{sP+9}, 0")
        e.ins(f"s_add_u32 s{sP+18}, s{sP+18}, s{sT3}")
        e.ins(f"s_addc_u32 s{sP+19}, s{sP+19}, 0")
        e.ins(f"s_add_u32 s{sX}, s{sP+10}, s{sT2}")
        e.ins(f"s_addc_u32 s{sX+1}, s{sP+11}, 0")
        e.ins(f"s_add_u32 s{sWQ}, s{sP+16}, s{sT1}")
        e.ins(f"s_addc_u32 s{sWQ+1}, s{sP+17}, 0")
        e.ins(f"s_mov_b32 s{sY}, s{sWS}")
        e.ins(f"s_mov_b32 s{sY+1}, s{sWS+1}")
        e.ins(f"s_mov_b32 s{sC}, {f32bits(C):#x}")
        e.ins(f"s_mov_b32 s{sMASK}, 0xffff0000")
        e.ins(f"s_mov_b32 s{sSELLO}, 0x05040100")
        e.ins(f"s_mov_b32 s{sSELHI}, 0x07060302")
        e.ins(f"s_mov_b32 s{sCM}, 0xcccccccc")
        e.ins(f"s_mov_b32 s{sCM+1}, 0xcccccccc")
        e.ins(f"s_mov_b32 s{sPROB}, 0")
        e.ins(f"s_mov_b32 s{sSO}, 0")
        e.ins(f"s_lshl_b32 s{sM0N}, s{sWAVE}, 14")
        e.ins(f"v_add_u32 v{vWQ1}, 0x2000, v{vWQ0}")
        e.ins(f"v_lshrrev_b32 v{vT0}, 3, v{vLANE}")
        e.ins(f"v_and_b32 v{vT1}, 7, v{vLANE}")
        e.ins(f"v_and_b32 v{vT2}, 2, v{vT0}")
        e.ins(f"v_lshlrev_b32 v{vT0}, 10, v{vT0}")
        e.ins(f"v_xor_b32 v{vT1}, v{vT1}, v{vT2}")
        e.ins(f"v_lshl_add_u32 v{vT0}, v{vT1}, 4, v{vT0}")
        e.ins(f"s_lshl_b32 s{sT0}, s{sWAVE}, 7")
        e.ins(f"v_add_u32 v{vWOE}, s{sT0}, v{vT0}")
        e.ins(f"v_xor_b32 v{vWOO}, 64, v{vWOE}")
        e.ins(f"v_lshrrev_b32 v{vT0}, 4, v{vLANE}")
        e.ins(f"v_bfe_u32 v{vT1}, v{vLANE}, 2, 2")
        e.ins(f"v_lshl_add_u32 v{vT1}, v{vT0}, 3, v{vT1}")
        e.ins(f"v_lshlrev_b32 v{vT1}, 7, v{vT1}")
        e.ins(f"v_bfe_u32 v{vT2}, v{vLANE}, 3, 2")
        e.ins(f"v_lshl_add_u32 v{vT1}, v{vT2}, 5, v{vT1}")
        e.ins(f"v_and_b32 v{vT2}, 3, v{vLANE}")
        e.ins(f"v_lshl_add_u32 v{vT1}, v{vT2}, 3, v{vT1}")
        e.ins(f"v_add_u32 v{vA[0]}, s{sM0N}, v{vT1}")
        for t in range(1, 4):
            e.ins(f"v_xor_b32 v{vA[t]}, {t<<5}, v{vA[0]}")
        e.ins(f"v_and_b32 v{vT1}, 15, v{vLANE}")
        e.ins(f"v_lshlrev_b32 v{vT2}, 5, v{vT1}")
        e.ins(f"v_lshl_add_u32 v{vT2}, v{vT0}, 3, v{vT2}")
        e.ins(f"v_add_u32 v{vQRA}, {LDS_QW:#x}, v{vT2}")
        e.ins(f"s_lshl_b32 s{sT0}, s{sWAVE}, 9")
        e.ins(f"v_add_u32 v{vQWA}, s{sT0}, v{vQRA}")
        e.ins(f"v_lshlrev_b32 v{vT2}, 4, v{vT1}")
        e.ins(f"v_lshl_add_u32 v{vT2}, v{vT0}, 2, v{vT2}")
        e.ins(f"s_mul_i32 s{sT0}, s{sWAVE}, {OA_STRIDE}")
        e.ins(f"s_add_u32 s{sT0}, s{sT0}, {LDS_OA:#x}")
        e.ins(f"v_add_u32 v{vOWA}, s{sT0}, v{vT2}")
        e.ins(f"v_mul_u32_u24 v{vT2}, {OA_STRIDE}, v{vT1}")
        e.ins(f"v_lshl_add_u32 v{vT2}, v{vT0}, 4, v{vT2}")
        e.ins(f"v_add_u32 v{vAFA}, {LDS_OA:#x}, v{vT2}")
        e.ins(f"s_lshl_b32 s{sT0}, s{sWAVE}, 3")
        e.ins(f"s_add_u32 s{sT0}, s{sT0}, {LDS_ML:#x}")
        e.ins(f"v_mov_b32 v{vMWA}, s{sT0}")
        e.ins(f"v_and_b32 v{vT2}, 1, v{vT0}")
        e.ins(f"v_lshlrev_b32 v{vT2}, 5, v{vT2}")
        e.ins(f"v_add_u32 v{vMLA}, {LDS_ML:#x}, v{vT2}")
        e.ins(f"v_xor_b32 v{vMLB}, 32, v{vMLA}")
        e.ins(f"v_lshlrev_b32 v{vL4}, 2, v{vLANE}")
        e.ins(f"s_lshl_b32 s{sT0}, s{sB}, 3")
        e.ins(f"s_add_u32 s{sT0}, s{sT0}, s{sWAVE}")
        e.ins(f"s_mul_i32 s{sT0}, s{sT0}, {BLK}")
        e.ins(f"s_lshl_b32 s{sT1}, s{sH}, 2")
        e.ins(f"s_add_u32 s{sT1}, s{sT1}, s{sQD}")
        e.ins(f"s_lshl_b32 s{sMO}, s{sT1}, 3")
        e.ins(f"s_add_u32 s{sMO}, s{sMO}, s{sT0}")
        e.ins(f"s_add_u32 s{sMO}, s{sMO}, 0x8000")
        e.ins(f"s_and_b32 s{sT2}, s{sT1}, 15")
        e.ins(f"s_lshl_b32 s{sT2}, s{sT2}, 2")
        e.ins(f"s_bfe_u32 s{sT3}, s{sT1}, 0x20004")
        e.ins(f"s_add_u32 s{sT2}, s{sT2}, s{sT3}")
        e.ins(f"s_and_b32 s{sT3}, s{sT1}, 64")
        e.ins(f"s_add_u32 s{sT2}, s{sT2}, s{sT3}")
        e.ins(f"s_lshl_b32 s{sT2}, s{sT2}, 8")
        e.ins(f"s_add_u32 s{sYO}, s{sT2}, s{sT0}")
        for i in range(8):
            e.ins(f"v_mov_b32 v{vQA+i}, 0")
        for i in range(8):
            e.wait(("pro", i), ("wq", 2 * i + 1))
            if i == 7:
                stamp(e, 2)
            qpair(e, vBF + 8 * i, vBF + 8 * i + 4, vW + i, vQA)
        rowreduce8(e, vQA, vU, vU + 1)
        e.ins(f"ds_write_b64 v{vQWA}, {vr(vU,2)}")
        e.ins("s_waitcnt lgkmcnt(0)")
        e.ins("s_barrier")
        for w in range(8):
            e.ins(f"ds_read_b64 {vr(vS+2*w,2)}, v{vQRA} offset:{w*512}")
        e.ins(f"v_add_u32 v{vQWA}, 0x1000, v{vQWA}")
        e.ins(f"v_add_u32 v{vQRA}, 0x1000, v{vQRA}")
        e.ins("s_waitcnt lgkmcnt(0)")
        q_final(e)
        stamp(e, 3)

    def k_body(e, name, b, fin):
        g0 = 8 * b
        for i in range(8):
            e.wait((name, i), ("r", g0 + i))
            if i + F >= fin:
                ring_issue(e, g0 + i + F)
            R0 = slot(i)
            e.ins(f"v_dot2_f32_bf16 v{vS+i}, v{R0}, v{vQ}, 0")
            for kk in range(1, 4):
                e.ins(f"v_dot2_f32_bf16 v{vS+i}, v{R0+kk}, v{vQ+kk}, v{vS+i}")
            if i in (1, 5):
                e.ins(f"s_mov_b32 m0, s{sM0N}")
                e.ins(f"s_add_u32 s{sM0N}, s{sM0N}, 0x400")
                e.issue(f"buffer_load_dwordx4 v{vWOE if i == 1 else vWOO}, {sr(sWO,4)}, s{sSO} offen{wf} lds", ("dma", b, i))
                e.ins(f"s_add_u32 s{sSO}, s{sSO}, 0x2000")
            if i in (2, 4, 6):
                e.ins(f"v_add_f32_dpp v{vS+i-2}, v{vS+i-2}, v{vS+i-2} row_ror:8 row_mask:0xf bank_mask:0x3")
                e.ins(f"v_add_f32_dpp v{vS+i-2}, v{vS+i-1}, v{vS+i-1} row_ror:8 row_mask:0xf bank_mask:0xc")
            if i == 5:
                e.ins(f"v_add_f32_dpp v{vS}, v{vS}, v{vS} row_shl:4 row_mask:0xf bank_mask:0x5")
                e.ins(f"v_add_f32_dpp v{vS}, v{vS+2}, v{vS+2} row_shr:4 row_mask:0xf bank_mask:0xa")
            if i == 6:
                e.ins(f"v_add_f32_dpp v{vS}, v{vS}, v{vS} quad_perm:[2,3,0,1] row_mask:0xf bank_mask:0xf")
        for r in range(7, 4, -1):
            e.ins(f"v_mov_b32 v{vSC+r}, v{vSC+r-1}")
        e.ins(f"v_add_f32_dpp v{vS+6}, v{vS+6}, v{vS+6} row_ror:8 row_mask:0xf bank_mask:0x3")
        e.ins(f"v_add_f32_dpp v{vS+6}, v{vS+7}, v{vS+7} row_ror:8 row_mask:0xf bank_mask:0xc")
        e.ins(f"v_add_f32_dpp v{vS+4}, v{vS+4}, v{vS+4} row_shl:4 row_mask:0xf bank_mask:0x5")
        e.ins(f"v_mov_b32 v{vSC+4}, v{vSC+3}")
        e.ins(f"v_add_f32_dpp v{vS+4}, v{vS+6}, v{vS+6} row_shr:4 row_mask:0xf bank_mask:0xa")
        e.ins(f"v_mov_b32 v{vSC+3}, v{vSC+2}")
        e.ins(f"v_mov_b32 v{vSC+2}, v{vSC+1}")
        e.ins(f"v_add_f32_dpp v{vS+4}, v{vS+4}, v{vS+4} quad_perm:[2,3,0,1] row_mask:0xf bank_mask:0xf")
        e.ins(f"v_mov_b32 v{vSC+1}, v{vSC}")
        e.ins(f"v_cndmask_b32 v{vS}, v{vS}, v{vS+4}, {sr(sCM,2)}")
        e.ins(f"s_add_u32 s{sCNT}, s{sCNT}, 1")
        e.ins(f"s_cmp_lt_u32 s{sCNT}, 8")
        e.ins(f"v_add_f32_dpp v{vSC}, v{vS}, v{vS} quad_perm:[1,0,3,2] row_mask:0xf bank_mask:0xf")

    def b_k0(e, b):
        e.raw(".p2align 4")
        e.label("L_prob")
        e.ins(f"s_mov_b32 s{sCNT}, 0")
        k_body(e, "k0", b, F0 if b == 0 else 8)

    def b_ks(e, b):
        e.label("L_ks")
        k_body(e, "ks", b, F)
        e.ins("s_cbranch_scc1 L_ks")

    def b_kv(e, b):
        stamp(e, 4)
        e.ins(f"v_max3_f32 v{vM}, v{vSC}, v{vSC+1}, v{vSC+2}")
        e.ins(f"v_max3_f32 v{vT0}, v{vSC+3}, v{vSC+4}, v{vSC+5}")
        e.ins(f"v_max3_f32 v{vM}, v{vSC+6}, v{vSC+7}, v{vM}")
        e.ins(f"v_max_f32 v{vM}, v{vM}, v{vT0}")
        wqn_issue(e, ("wqn", b))
        for st in (8, 4, 2):
            e.ins(f"v_max_f32_dpp v{vM}, v{vM}, v{vM} row_ror:{st} row_mask:0xf bank_mask:0xf")
        wave_allreduce(e, "v_max_f32", vM, vT0)
        e.ins(f"v_mul_f32 v{vM}, s{sC}, v{vM}")
        for r in range(8):
            e.ins(f"v_fma_f32 v{vSC+r}, v{vSC+r}, s{sC}, -v{vM}")
        for r in range(8):
            e.ins(f"v_exp_f32 v{vSC+r}, v{vSC+r}")
        for i in range(8):
            e.ins(f"v_mov_b32 v{vACC+i}, 0")
        for i in range(8):
            e.ins(f"v_mov_b32 v{vQA+i}, 0")
        e.ins(f"v_add_f32 v{vL}, v{vSC}, v{vSC+1}")
        for r in range(2, 8):
            e.ins(f"v_add_f32 v{vL}, v{vL}, v{vSC+r}")
        e.wait(("kv", 0), ("dma", b - 1, 5))
        for s in range(4):
            for t in range(4):
                for h in range(2):
                    e.ins(f"ds_read_b64_tr_b16 {vr(vBF+16*s+4*t+2*h,2)}, v{vA[t]} offset:{4096*s+512*h}")
        e.ins(f"s_mov_b32 s{sNX}, s{sKN}")
        e.ins(f"s_mov_b32 s{sNX+1}, s{sKN+1}")
        e.ins(f"s_mov_b32 s{sNX+2}, s{sKN+2}")
        e.ins(f"s_mov_b32 s{sCNT}, 0")

    def v_body(e, name, b, late):
        g0 = 8 * b
        for i in range(8):
            e.wait((name, i), ("r", g0 + i))
            if not late:
                ring_issue(e, g0 + i + F)
            R0 = slot(i)
            e.ins(f"v_mov_b32_dpp v{vP}, v{vSC+7} row_newbcast:{KEYLANE[i]} row_mask:0xf bank_mask:0xf")
            for k in range(4):
                e.ins(f"v_lshlrev_b32 v{vU+2*k}, 16, v{R0+k}")
                e.ins(f"v_and_b32 v{vU+2*k+1}, s{sMASK}, v{R0+k}")
            if late:
                ring_issue(e, g0 + i + 8)
            for k in range(4):
                e.ins(f"v_pk_fma_f32 {vr(vACC+2*k,2)}, {vr(vU+2*k,2)}, {vr(vP,2)}, {vr(vACC+2*k,2)} op_sel_hi:[1,0,1]")
            if i == 4:
                e.wait((name, "q"), ("wqn", b))
                qpair(e, vW, vW + 4, vXP, vQA)
                wqn_issue(e, ("wqn", b + 1))
        for r in range(7, 0, -1):
            e.ins(f"v_mov_b32 v{vSC+r}, v{vSC+r-1}")
        e.ins(f"s_add_u32 s{sCNT}, s{sCNT}, 1")

    def b_vs(e, b):
        e.label("L_vs")
        v_body(e, "vs", b, False)
        e.ins(f"s_cmp_lt_u32 s{sCNT}, {8 - nboost}")
        e.ins("s_cbranch_scc1 L_vs")

    def b_burst(e, b):
        for g in range(8 * b + F, 8 * b + 8):
            ring_issue(e, g)

    def b_v8(e, b):
        e.label("L_v8")
        v_body(e, "v8", b, True)
        e.ins(f"s_cmp_lt_u32 s{sCNT}, 8")
        e.ins("s_cbranch_scc1 L_v8")

    def b_epi(e, prob):
        stamp(e, 5)
        for st in (8, 4, 2):
            e.ins(f"v_add_f32_dpp v{vL}, v{vL}, v{vL} row_ror:{st} row_mask:0xf bank_mask:0xf")
        rowreduce8(e, vACC, vU, vU + 1)
        e.ins(f"v_cvt_pk_bf16_f32 v{vU+2}, v{vU}, v{vU+1}")
        wave_allreduce(e, "v_add_f32", vL, vT0)
        e.ins(f"v_lshlrev_b32 v{vU+4}, 16, v{vU+2}")
        e.ins(f"v_and_b32 v{vU+5}, s{sMASK}, v{vU+2}")
        e.ins(f"v_sub_f32 v{vU+4}, v{vU}, v{vU+4}")
        e.ins(f"v_sub_f32 v{vU+5}, v{vU+1}, v{vU+5}")
        e.ins(f"ds_write_b32 v{vOWA}, v{vU+2}")
        e.ins(f"v_cvt_pk_bf16_f32 v{vU+3}, v{vU+4}, v{vU+5}")
        e.ins(f"ds_write_b32 v{vOWA}, v{vU+3} offset:{8*OA_STRIDE}")
        e.ins("s_mov_b64 exec, 1")
        e.ins(f"ds_write_b64 v{vMWA}, {vr(vM,2)}")
        e.ins("s_mov_b64 exec, -1")
        e.ins(f"s_cmp_lg_u32 s{sPROB}, 0")
        e.ins("s_cbranch_scc1 L_noq1")
        rowreduce8(e, vQA, vU + 6, vU + 7)
        e.ins(f"ds_write_b64 v{vQWA}, {vr(vU+6,2)}")
        e.label("L_noq1")
        e.ins("s_waitcnt lgkmcnt(0)")
        e.ins("s_barrier")
        for s in range(4):
            e.ins(f"ds_read_b128 {vr(vAF+4*s,4)}, v{vAFA} offset:{64*s}")
        e.ins(f"ds_read_b128 {vr(vML,4)}, v{vMLA}")
        e.ins(f"ds_read_b128 {vr(vML+4,4)}, v{vMLA} offset:16")
        e.ins(f"ds_read_b128 {vr(vML+8,4)}, v{vMLB}")
        e.ins(f"ds_read_b128 {vr(vML+12,4)}, v{vMLB} offset:16")
        for s in range(4):
            e.ins(f"s_waitcnt lgkmcnt({7-s})")
            for t in range(4):
                c = "0" if s == 0 else vr(vD + 4 * t, 4)
                e.ins(f"v_mfma_f32_16x16x32_bf16 {vr(vD+4*t,4)}, {vr(vAF+4*s,4)}, {vr(vBF+16*s+4*t,4)}, {c}")
        e.ins("s_waitcnt lgkmcnt(0)")
        e.ins(f"v_max3_f32 v{vT0}, v{vML}, v{vML+2}, v{vML+4}")
        e.ins(f"v_max3_f32 v{vT0}, v{vML+6}, v{vML+8}, v{vT0}")
        e.ins(f"v_max3_f32 v{vT0}, v{vML+10}, v{vML+12}, v{vT0}")
        e.ins(f"v_max_f32 v{vM}, v{vML+14}, v{vT0}")
        for r in range(8):
            e.ins(f"v_sub_f32 v{vSL+r}, v{vML+2*r}, v{vM}")
        for r in range(8):
            e.ins(f"v_exp_f32 v{vSL+r}, v{vSL+r}")
        for t in range(4):
            e.ins(f"v_mul_f32 v{vU+t}, v{vSL}, v{vD+4*t}")
        for r in range(1, 4):
            for t in range(4):
                e.ins(f"v_fmac_f32 v{vU+t}, v{vSL+r}, v{vD+4*t+r}")
        e.ins(f"v_mul_f32 v{vL}, v{vSL}, v{vML+1}")
        e.ins(f"v_permlane32_swap_b32 v{vU}, v{vU+2}")
        e.ins(f"v_permlane32_swap_b32 v{vU+1}, v{vU+3}")
        e.ins(f"v_fmac_f32 v{vL}, v{vSL+1}, v{vML+3}")
        e.ins(f"v_add_f32 v{vU}, v{vU}, v{vU+2}")
        e.ins(f"v_add_f32 v{vU+1}, v{vU+1}, v{vU+3}")
        e.ins(f"v_fmac_f32 v{vL}, v{vSL+2}, v{vML+5}")
        e.ins(f"v_fmac_f32 v{vL}, v{vSL+3}, v{vML+7}")
        e.ins(f"v_permlane16_swap_b32 v{vU}, v{vU+1}")
        e.ins(f"v_add_f32 v{vU}, v{vU}, v{vU+1}")
        e.issue(f"buffer_store_dword v{vU}, v{vL4}, {sr(sY,4)}, s{sYO} offen")
        for r in range(4, 8):
            e.ins(f"v_fmac_f32 v{vL}, v{vSL+r}, v{vML+2*r+1}")
        e.ins("s_mov_b64 exec, 1")
        e.issue(f"buffer_store_dwordx2 {vr(vM,2)}, v{vL4}, {sr(sY,4)}, s{sMO} offen")
        e.ins("s_mov_b64 exec, -1")
        e.ins(f"s_cmp_lg_u32 s{sPROB}, 0")
        e.ins("s_cbranch_scc1 L_fin")
        for w in range(8):
            e.ins(f"ds_read_b64 {vr(vS+2*w,2)}, v{vQRA} offset:{w*512}")
        e.ins(f"s_mov_b32 s{sPROB}, 1")
        e.ins(f"s_mov_b32 s{sNX}, s{sVB}")
        e.ins(f"s_mov_b32 s{sNX+1}, s{sVB+1}")
        e.ins(f"s_mov_b32 s{sKN+2}, 0")
        e.ins(f"s_mov_b32 s{sWQ+2}, 0")
        e.ins(f"s_mov_b32 s{sX+2}, 0")
        e.ins(f"s_mov_b32 s{sWO}, s{sP+18}")
        e.ins(f"s_mov_b32 s{sWO+1}, s{sP+19}")
        e.ins(f"s_mov_b32 s{sSO}, 0")
        e.ins(f"s_lshl_b32 s{sM0N}, s{sWAVE}, 14")
        e.ins(f"s_add_u32 s{sYO}, s{sYO}, {16*BLK:#x}")
        e.ins(f"s_add_u32 s{sMO}, s{sMO}, {16*BLK:#x}")
        e.ins(f"v_add_u32 v{vOWA}, {OA_SIZE:#x}, v{vOWA}")
        e.ins(f"v_add_u32 v{vAFA}, {OA_SIZE:#x}, v{vAFA}")
        e.ins(f"v_add_u32 v{vMWA}, 64, v{vMWA}")
        e.ins(f"v_add_u32 v{vMLA}, 64, v{vMLA}")
        e.ins(f"v_add_u32 v{vMLB}, 64, v{vMLB}")
        e.ins("s_waitcnt lgkmcnt(0)")
        q_final(e)
        stamp(e, 6)
        e.ins("s_nop 1")
        e.ins("s_branch L_prob")
        e.label("L_fin")

    assert vL == vM + 1 and vM % 2 == 0

    sim = Sim()
    b_prologue(sim)
    for prob in range(2):
        b0 = 16 * prob
        b_k0(sim, b0)
        for b in range(1, 8):
            b_ks(sim, b0 + b)
        b_kv(sim, b0 + 8)
        for b in range(8, 16 - nboost):
            b_vs(sim, b0 + b)
        b_burst(sim, b0 + 16 - nboost)
        for b in range(16 - nboost, 16):
            b_v8(sim, b0 + b)
        b_epi(sim, prob)
    e = Emit(a, sim.N)
    assert F0 == 8
    b_prologue(e)
    b_k0(e, 0)
    b_ks(e, 1)
    b_kv(e, 8)
    b_vs(e, 8)
    b_burst(e, 16 - nboost)
    b_v8(e, 14)
    b_epi(e, 0)
    if diag:
        a("s_mov_b64 exec, 1")
        a("s_waitcnt vmcnt(0)")
        a(f"s_memrealtime {sr(sST+14,2)}")
        a(f"s_add_u32 s96, s{sWS}, 0x400000")
        a(f"s_addc_u32 s97, s{sWS+1}, 0")
        a("s_mov_b32 s98, 0x100000")
        a("s_mov_b32 s99, 0x00020000")
        a(f"s_lshl_b32 s{sT0}, s{sWG}, 3")
        a(f"s_add_u32 s{sT0}, s{sT0}, s{sWAVE}")
        a(f"s_lshl_b32 s{sT0}, s{sT0}, 5")
        a(f"s_getreg_b32 s{sT1}, hwreg(HW_REG_XCC_ID)")
        a("s_waitcnt lgkmcnt(0)")
        for i, si in enumerate((0, 1, 2, 3, 5, 7)):
            a(f"v_mov_b32 v{vACC+i}, s{sST+2*si}")
        a(f"v_mov_b32 v{vACC+6}, s{sT1}")
        a(f"v_mov_b32 v{vACC+7}, s{sST+12}")
        a(f"buffer_store_dwordx4 {vr(vACC,4)}, v{vL4}, s[96:99], s{sT0} offen")
        a(f"buffer_store_dwordx4 {vr(vACC+4,4)}, v{vL4}, s[96:99], s{sT0} offen offset:16")
    a.label("L_attn_end")
    a("s_endpgm")
    return a, NSGPR, sim.N


def gen_reduce(diag=False):
    a = Asm()
    a.valloc(1)
    vLANE, vOFF, vT0, vT1, vWg, vLA = [a.valloc() for _ in range(6)]
    vML = a.valloc(2, 2)
    vACC = a.valloc(4, 4)
    vY = a.valloc(64, 4)
    a.label("reduce_kernel")
    a("s_cmp_ge_u32 s2, 32")
    a("s_cbranch_scc1 L_red_end")
    if diag:
        a("s_memrealtime s[24:25]")
    a("s_load_dwordx2 s[4:5], s[0:1], 80")
    a("s_load_dwordx2 s[6:7], s[0:1], 96")
    a(f"s_mul_i32 s3, s2, {BLK}")
    a(f"v_and_b32 v{vLANE}, 63, v0")
    a(f"v_lshrrev_b32 v{vT0}, 6, v0")
    a(f"v_lshlrev_b32 v{vOFF}, 4, v{vLANE}")
    a(f"v_lshl_add_u32 v{vOFF}, v{vT0}, 14, v{vOFF}")
    a(f"v_readfirstlane_b32 s22, v{vT0}")
    a(f"v_lshlrev_b32 v{vT1}, 3, v0")
    a(f"s_mov_b32 s10, {BLK}")
    a("s_mov_b32 s11, 0x00020000")
    a("s_mov_b32 s14, 4096")
    a("s_mov_b32 s15, 0x00020000")
    a("s_movk_i32 s16, 0x1000")
    a("s_movk_i32 s17, 0x2000")
    a("s_movk_i32 s18, 0x3000")
    a("s_mov_b32 s19, 0x8000")
    a("s_waitcnt lgkmcnt(0)")
    a("s_add_u32 s8, s6, s3")
    a("s_addc_u32 s9, s7, 0")
    a(f"buffer_load_dwordx2 {vr(vML,2)}, v{vT1}, s[8:11], s19 offen")
    for i in range(16):
        so = "0" if i < 4 else f"s{15 + i // 4}"
        a(f"buffer_load_dwordx4 {vr(vY+4*i,4)}, v{vOFF}, s[8:11], {so} offen offset:{(i%4)*1024}")
    a("s_mov_b32 s12, s4")
    a("s_mov_b32 s13, s5")
    a("s_bfe_u32 s20, s2, 0x10003")
    a("s_lshl_b32 s20, s20, 11")
    a("s_lshr_b32 s21, s2, 4")
    a("s_lshl_b32 s21, s21, 10")
    a("s_add_u32 s20, s20, s21")
    a("s_and_b32 s21, s2, 7")
    a("s_lshl_b32 s21, s21, 7")
    a("s_add_u32 s20, s20, s21")
    a(f"v_and_b32 v{vT0}, 15, v{vLANE}")
    a(f"v_lshrrev_b32 v{vT1}, 4, v{vLANE}")
    a(f"v_lshl_add_u32 v{vOFF}, v{vT0}, 2, v{vT1}")
    a(f"v_lshlrev_b32 v{vOFF}, 1, v{vOFF}")
    a(f"v_lshlrev_b32 v{vLA}, 2, v{vLANE}")
    for k in range(4):
        a(f"v_mov_b32 v{vACC+k}, 0")
    a("s_waitcnt vmcnt(16)")
    a(f"v_max_f32_dpp v{vT0}, v{vML}, v{vML} quad_perm:[1,0,3,2] row_mask:0xf bank_mask:0xf")
    a(f"v_max_f32_dpp v{vT0}, v{vT0}, v{vT0} quad_perm:[2,3,0,1] row_mask:0xf bank_mask:0xf")
    a(f"v_sub_f32 v{vWg}, v{vML}, v{vT0}")
    a(f"v_exp_f32 v{vWg}, v{vWg}")
    a(f"v_mul_f32 v{vT0}, v{vWg}, v{vML+1}")
    a(f"v_add_f32_dpp v{vT0}, v{vT0}, v{vT0} quad_perm:[1,0,3,2] row_mask:0xf bank_mask:0xf")
    a(f"v_add_f32_dpp v{vT0}, v{vT0}, v{vT0} quad_perm:[2,3,0,1] row_mask:0xf bank_mask:0xf")
    a(f"v_rcp_f32 v{vT0}, v{vT0}")
    a(f"v_mul_f32 v{vWg}, v{vWg}, v{vT0}")
    for i in range(16):
        a(f"s_waitcnt vmcnt({15-i})")
        for k in range(4):
            a(f"v_fmac_f32_dpp v{vACC+k}, v{vWg}, v{vY+4*i+k} row_newbcast:{i} row_mask:0xf bank_mask:0xf")
    a(f"v_permlane32_swap_b32 v{vACC}, v{vACC+2}")
    a(f"v_permlane32_swap_b32 v{vACC+1}, v{vACC+3}")
    a(f"v_add_f32 v{vACC}, v{vACC}, v{vACC+2}")
    a(f"v_add_f32 v{vACC+1}, v{vACC+1}, v{vACC+3}")
    a(f"v_permlane16_swap_b32 v{vACC}, v{vACC+1}")
    a(f"v_add_f32 v{vACC}, v{vACC}, v{vACC+1}")
    a("s_cmp_eq_u32 s22, 0")
    a("s_cbranch_scc1 L_red_w0")
    a(f"ds_write_b32 v{vLA}, v{vACC}")
    a("s_waitcnt lgkmcnt(0)")
    a("s_barrier")
    a("s_endpgm")
    a.label("L_red_w0")
    a("s_barrier")
    a(f"ds_read_b32 v{vT0}, v{vLA}")
    a("s_waitcnt lgkmcnt(0)")
    a(f"v_add_f32 v{vACC}, v{vACC}, v{vT0}")
    a(f"v_cvt_pk_bf16_f32 v{vACC}, v{vACC}, v{vACC}")
    a(f"buffer_store_short v{vACC}, v{vOFF}, s[12:15], s20 offen")
    if diag:
        a("s_waitcnt vmcnt(0)")
        a("s_memrealtime s[26:27]")
        a("s_add_u32 s28, s6, 0x410000")
        a("s_addc_u32 s29, s7, 0")
        a("s_mov_b32 s30, 0x100000")
        a("s_mov_b32 s31, 0x00020000")
        a("s_lshl_b32 s3, s2, 3")
        a("s_waitcnt lgkmcnt(0)")
        a(f"v_mov_b32 v{vACC}, s24")
        a(f"v_mov_b32 v{vACC+1}, s26")
        a(f"v_mov_b32 v{vT0}, 0")
        a("s_mov_b64 exec, 1")
        a(f"buffer_store_dwordx2 {vr(vACC,2)}, v{vT0}, s[28:31], s3 offen")
    a.label("L_red_end")
    a("s_endpgm")
    return a, 32


def build(**kw):
    a1, s1, N = gen_attn(**kw)
    a2, s2 = gen_reduce(kw.get("diag", False))
    k1 = NAME + "_kernel"
    out = HEADER
    out += f"; @launch kernel={k1} grid=(256,1,1) block=(512,1,1) lds={LDS_TOTAL}\n"
    out += "; @launch kernel=reduce_kernel grid=(32,1,1) block=(128,1,1) lds=256\n"
    out += '.amdgcn_target "amdgcn-amd-amdhsa--gfx950"\n.text\n'
    out += f".globl {k1}\n.p2align 8\n.type {k1},@function\n" + a1.text()
    out += ".globl reduce_kernel\n.p2align 8\n.type reduce_kernel,@function\n" + a2.text()
    out += '.section .rodata,"a"\n.p2align 6\n' + kd(k1, a1, s1) + ".p2align 6\n" + kd("reduce_kernel", a2, s2)
    return out, N


if __name__ == "__main__":
    import argparse
    ap = argparse.ArgumentParser()
    ap.add_argument("-o", default=f"cdna_kernels/{NAME}.s")
    ap.add_argument("--F", type=int, default=4)
    ap.add_argument("--kv", default="nt")
    ap.add_argument("--wf", default="nt")
    ap.add_argument("--diag", action="store_true")
    ap.add_argument("--map", default="p67501234")
    ap.add_argument("--noq", action="store_true")
    ap.add_argument("--pbar", action="store_true")
    ap.add_argument("--nboost", type=int, default=2)
    ap.add_argument("-v", action="store_true")
    args = ap.parse_args()
    out, N = build(F=args.F, kvflags=args.kv, wflags=args.wf, diag=args.diag, wmap=args.map, noq=args.noq,
                   nboost=args.nboost, pbar=args.pbar)
    open(args.o, "w").write(out)
    if args.v:
        print(N)
```

```python
import math
from gen import HEADER, NAME
from asmlib import Asm, vr, sr, f32bits, kd

BLK = 128 * 256
ML_OFF = 32 * BLK
MODE_OFF = 0x120000
LDS_QW = 131072
LDS_OA = LDS_QW + 8192
OA_STRIDE = 272
OA_SIZE = 16 * OA_STRIDE
LDS_ML = LDS_OA + 2 * OA_SIZE
LDS_MODE = LDS_ML + 128
LDS_TOTAL = LDS_MODE + 16
KEYLANE = [4 * [0, 2, 1, 3][k & 3] + 2 * (k >> 2) for k in range(8)]


class Sim:
    def __init__(self):
        self.order = {}
        self.n = 0
        self.N = {}

    def ins(self, s): pass
    def label(self, s): pass
    def raw(self, s): pass

    def issue(self, s, key=None):
        self.order[key] = self.n
        self.n += 1

    def wait(self, site, key):
        n = self.n - 1 - self.order[key]
        self.N[site] = min(self.N.get(site, 63), n)


class Emit:
    def __init__(self, a, N):
        self.a, self.N = a, N

    def ins(self, s): self.a(s)
    def label(self, s): self.a.label(s)
    def raw(self, s): self.a.raw(s)
    def issue(self, s, key=None): self.a(s)
    def wait(self, site, key): self.a(f"s_waitcnt vmcnt({self.N[site]})")


def gen_attn(F=4, kvflags="nt", wflags="nt", diag=False, wmap="p67501234", noq=False, nboost=2, pbar=False, F0=8,
             Flo=None, ctl=None, theta=32, mdf="", cx="las", pf="sc1", defer=False, touch=False, stf=""):
    a = Asm()
    C = (128.0 ** -0.5) * math.log2(math.e)
    kf = (" " + kvflags) if kvflags else ""
    wf = (" " + wflags) if wflags else ""
    mkP = lambda F: [F[i % len(F)] for i in range(8)]
    PH = mkP(F)
    PL = mkP(Flo) if Flo else None
    ENTRY = PH[7]
    for P in (PH, PL):
        if P:
            assert all(1 <= x <= 7 for x in P) and P[7] == ENTRY
            assert all(i + P[i] <= i + 1 + P[(i + 1) % 8] for i in range(8))
    assert 1 <= nboost <= 7
    fb = ctl in ("fb", "fb2")
    fb2 = ctl == "fb2"
    fb3 = ctl == "fb3"

    def steady_issue(e, g0, i, fin, P):
        prev = max(fin - 1, (i - 1 + P[i - 1]) if i else -1)
        for j in range(prev + 1, i + P[i] + 1):
            ring_issue(e, g0 + j)

    sWG, sWAVE = 2, 3
    sP = 4
    sWS = 24
    sPF, sWQ, sX, sWO, sY = 28, 32, 36, 40, 44
    sNX = 48
    sVC = 52
    sKN = 54
    sVB = 58
    sT0, sT1, sT2, sT3 = 60, 61, 62, 63
    sC, sMASK, sSELLO, sSELHI, sCNT, sPO = 64, 65, 66, 67, 68, 69
    sH, sB, sQD, sPROB = 70, 71, 72, 73
    sSO, sM0N, sYO, sMO = 74, 75, 76, 77
    sCM = 78
    sMODE, sCC = 26, 27
    sDB = 80
    sDO = 53
    sLEAD = 57
    sMDN = 52
    NSGPR = 84
    sST = 84
    if diag:
        NSGPR = 100

    def stamp(e, i):
        if diag:
            e.ins(f"s_memrealtime {sr(sST+2*i,2)}")

    a.valloc(1)
    vLANE = a.valloc()
    vPO = a.valloc()
    vT0, vT1, vT2 = a.valloc(), a.valloc(), a.valloc()
    vMA = a.valloc(4, 4)
    vM, vL = vMA + 2, vMA + 3
    vWOE, vWOO = a.valloc(), a.valloc()
    vWQ0, vWQ1, vXO = a.valloc(), a.valloc(), a.valloc()
    vXP = a.valloc()
    vA = [a.valloc() for _ in range(4)]
    vQWA, vQRA, vOWA, vAFA, vMLA, vMLB, vMWA, vL4 = [a.valloc() for _ in range(8)]
    vAT, vMD, vMDA, vONE, vAT2 = [a.valloc() for _ in range(5)]
    vTCH, vYA, vL16 = a.valloc(), a.valloc(), a.valloc()
    vP = a.valloc(2, 2)
    vQ = a.valloc(4, 4)
    vACC = a.valloc(8, 4)
    vQA = a.valloc(8, 4)
    vS = a.valloc(16, 4)
    vSC = a.valloc(8, 4)
    vU = a.valloc(8, 4)
    vW = a.valloc(8, 4)
    vBF = a.valloc(64, 4)
    vRING = a.valloc(32, 4)
    vAF = a.valloc(16, 4)
    vML = a.valloc(16, 4)
    vD = a.valloc(16, 4)
    vSL = a.valloc(8, 4)
    slot = lambda g: vRING + 4 * (g % 8)

    def ring_issue(e, g, first=False):
        if g % 4 == 0 and not first:
            e.ins(f"s_add_u32 s{sPO}, s{sPO}, 0x8000")
            if g % 8 == 0:
                e.ins(f"s_cmp_eq_u32 s{sPO}, 0x80000")
                e.ins(f"s_cselect_b32 s{sPF}, s{sNX}, s{sPF}")
                e.ins(f"s_cselect_b32 s{sPF+1}, s{sNX+1}, s{sPF+1}")
                e.ins(f"s_cselect_b32 s{sPF+2}, s{sNX+2}, s{sPF+2}")
                e.ins(f"s_cselect_b32 s{sPO}, 0, s{sPO}")
        e.issue(f"buffer_load_dwordx4 {vr(slot(g),4)}, v{vPO}, {sr(sPF,4)}, s{sPO} offen offset:{(g%4)*1024}{kf}", ("r", g))

    def rowreduce8(e, acc, u0, u1):
        for x, y in ((0, 4), (2, 6), (1, 5), (3, 7)):
            e.ins(f"v_permlane32_swap_b32 v{acc+x}, v{acc+y}")
        for x, y in ((0, 4), (2, 6), (1, 5), (3, 7)):
            e.ins(f"v_add_f32 v{acc+x}, v{acc+x}, v{acc+y}")
        e.ins(f"v_permlane16_swap_b32 v{acc+0}, v{acc+2}")
        e.ins(f"v_permlane16_swap_b32 v{acc+1}, v{acc+3}")
        e.ins(f"v_add_f32 v{u0}, v{acc+0}, v{acc+2}")
        e.ins(f"v_add_f32 v{u1}, v{acc+1}, v{acc+3}")

    def wave_allreduce(e, op, x, t):
        e.ins(f"v_mov_b32 v{t}, v{x}")
        e.ins(f"v_permlane32_swap_b32 v{x}, v{t}")
        e.ins(f"{op} v{x}, v{x}, v{t}")
        e.ins(f"v_mov_b32 v{t}, v{x}")
        e.ins(f"v_permlane16_swap_b32 v{x}, v{t}")
        e.ins(f"{op} v{x}, v{x}, v{t}")

    def q_final(e):
        for w in range(1, 8):
            e.ins(f"v_add_f32 v{vS}, v{vS}, v{vS+2*w}")
            e.ins(f"v_add_f32 v{vS+1}, v{vS+1}, v{vS+2*w+1}")
        e.ins(f"v_cvt_pk_bf16_f32 v{vQ}, v{vS}, v{vS+1}")
        e.ins(f"v_mov_b32 v{vQ+1}, v{vQ}")
        e.ins(f"v_permlane16_swap_b32 v{vQ}, v{vQ+1}")
        e.ins(f"v_mov_b32 v{vQ+2}, v{vQ}")
        e.ins(f"v_mov_b32 v{vQ+3}, v{vQ+1}")
        e.ins(f"v_permlane32_swap_b32 v{vQ}, v{vQ+2}")
        e.ins(f"v_permlane32_swap_b32 v{vQ+1}, v{vQ+3}")

    def qpair(e, w0, w1, xp, acc):
        for k in range(4):
            e.ins(f"v_perm_b32 v{vU+2*k}, v{w1+k}, v{w0+k}, s{sSELLO}")
            e.ins(f"v_perm_b32 v{vU+2*k+1}, v{w1+k}, v{w0+k}, s{sSELHI}")
        for k in range(8):
            e.ins(f"v_dot2c_f32_bf16 v{acc+k}, v{vU+k}, v{xp}")

    def wqn_issue(e, key):
        e.issue(f"buffer_load_dwordx4 {vr(vW,4)}, v{vWQ0}, {sr(sWQ,4)}, 0 offen{wf}", None)
        e.issue(f"buffer_load_dwordx4 {vr(vW+4,4)}, v{vWQ1}, {sr(sWQ,4)}, 0 offen{wf}", None)
        e.issue(f"buffer_load_dword v{vXP}, v{vXO}, {sr(sX,4)}, 0 offen", key)
        e.ins(f"v_add_u32 v{vWQ0}, 0x4000, v{vWQ0}")
        e.ins(f"v_add_u32 v{vWQ1}, 0x4000, v{vWQ1}")
        e.ins(f"v_add_u32 v{vXO}, 4, v{vXO}")

    bits = [int(c) for c in wmap[1:]]
    assert sorted(bits) == list(range(8))

    def field(e, dst, bl):
        i = 0
        first = True
        while i < len(bl):
            j = i
            while j + 1 < len(bl) and bl[j + 1] == bl[j] + 1:
                j += 1
            t = dst if first else sT3
            e.ins(f"s_bfe_u32 s{t}, s{sWG}, {((j - i + 1) << 16) | bl[i]:#x}")
            if i:
                e.ins(f"s_lshl_b32 s{t}, s{t}, {i}")
            if not first:
                e.ins(f"s_or_b32 s{dst}, s{dst}, s{sT3}")
            first = False
            i = j + 1

    def b_prologue(e):
        e.label(NAME + "_kernel")
        e.ins(f"s_cmp_ge_u32 s{sWG}, 256")
        e.ins("s_cbranch_scc1 L_attn_end")
        stamp(e, 0)
        e.ins(f"s_load_dwordx16 {sr(sP,16)}, s[0:1], 0")
        e.ins(f"s_load_dwordx4 {sr(sP+16,4)}, s[0:1], 64")
        e.ins(f"s_load_dwordx2 {sr(sWS,2)}, s[0:1], 96")
        if fb or fb3:
            e.ins(f"s_load_dwordx2 {sr(sDB,2)}, s[0:1], 88")
        field(e, sQD, bits[0:2])
        field(e, sB, bits[2:3])
        field(e, sH, bits[3:8])
        e.ins(f"v_lshrrev_b32 v{vT0}, 6, v0")
        e.ins(f"v_and_b32 v{vLANE}, 63, v0")
        e.ins(f"v_readfirstlane_b32 s{sWAVE}, v{vT0}")
        e.ins(f"v_lshrrev_b32 v{vT0}, 4, v0")
        e.ins(f"v_and_b32 v{vT1}, 15, v0")
        e.ins(f"v_lshlrev_b32 v{vT1}, 4, v{vT1}")
        e.ins(f"v_lshl_add_u32 v{vWQ0}, v{vT0}, 17, v{vT1}")
        e.ins(f"v_lshlrev_b32 v{vXO}, 5, v{vT0}")
        e.ins(f"v_lshlrev_b32 v{vPO}, 4, v{vLANE}")
        e.ins(f"s_lshl_b32 s{sT0}, s{sWAVE}, 12")
        e.ins(f"v_add_u32 v{vPO}, s{sT0}, v{vPO}")
        e.ins(f"s_lshl_b32 s{sT0}, s{sB}, 26")
        e.ins(f"s_lshl_b32 s{sT1}, s{sH}, 21")
        e.ins(f"s_lshl_b32 s{sT2}, s{sQD}, 19")
        e.ins(f"s_add_u32 s{sT0}, s{sT0}, s{sT1}")
        e.ins(f"s_add_u32 s{sT0}, s{sT0}, s{sT2}")
        e.ins(f"s_lshl_b32 s{sT1}, s{sH}, 8")
        e.ins(f"s_lshl_b32 s{sT2}, s{sB}, 10")
        e.ins(f"s_lshl_b32 s{sT3}, s{sH}, 17")
        for r, nrec in ((sPF, 1 << 19), (sWQ, 0 if noq else 511 * 8192 + 256), (sWO, 0 if noq else 131072),
                        (sX, 1024), (sY, MODE_OFF + 2048)):
            e.ins(f"s_mov_b32 s{r+2}, {nrec:#x}")
            e.ins(f"s_mov_b32 s{r+3}, 0x00020000")
        e.ins(f"s_mov_b32 s{sSO}, 0")
        e.ins(f"s_mov_b32 s{sPO}, 0")
        e.ins("s_waitcnt lgkmcnt(0)")
        stamp(e, 1)
        e.ins(f"s_add_u32 s{sX}, s{sP}, s{sT2}")
        e.ins(f"s_addc_u32 s{sX+1}, s{sP+1}, 0")
        e.ins(f"s_add_u32 s{sWQ}, s{sP+6}, s{sT1}")
        e.ins(f"s_addc_u32 s{sWQ+1}, s{sP+7}, 0")
        e.issue(f"buffer_load_dwordx4 {vr(vW,4)}, v{vXO}, {sr(sX,4)}, 0 offen")
        e.issue(f"buffer_load_dwordx4 {vr(vW+4,4)}, v{vXO}, {sr(sX,4)}, 0 offen offset:16")
        for j in range(16):
            e.issue(f"buffer_load_dwordx4 {vr(vBF+4*j,4)}, v{vWQ0}, {sr(sWQ,4)}, s{sSO} offen{wf}", ("wq", j))
            if j < 15:
                e.ins(f"s_add_u32 s{sSO}, s{sSO}, 0x2000")
        e.ins(f"s_add_u32 s{sPF}, s{sP+2}, s{sT0}")
        e.ins(f"s_addc_u32 s{sPF+1}, s{sP+3}, 0")
        if pbar:
            e.ins("s_barrier")
        for g in range(F0):
            ring_issue(e, g, first=(g == 0))
        e.ins(f"s_add_u32 s{sNX}, s{sP+4}, s{sT0}")
        e.ins(f"s_addc_u32 s{sNX+1}, s{sP+5}, 0")
        e.ins(f"s_mov_b32 s{sNX+2}, 0x80000")
        e.ins(f"s_mov_b32 s{sNX+3}, 0x00020000")
        e.ins(f"s_add_u32 s{sKN}, s{sP+12}, s{sT0}")
        e.ins(f"s_addc_u32 s{sKN+1}, s{sP+13}, 0")
        e.ins(f"s_mov_b32 s{sKN+2}, 0x80000")
        e.ins(f"s_add_u32 s{sVB}, s{sP+14}, s{sT0}")
        e.ins(f"s_addc_u32 s{sVB+1}, s{sP+15}, 0")
        e.ins(f"s_add_u32 s{sWO}, s{sP+8}, s{sT3}")
        e.ins(f"s_addc_u32 s{sWO+1}, s{sP+9}, 0")
        e.ins(f"s_add_u32 s{sP+18}, s{sP+18}, s{sT3}")
        e.ins(f"s_addc_u32 s{sP+19}, s{sP+19}, 0")
        e.ins(f"s_add_u32 s{sX}, s{sP+10}, s{sT2}")
        e.ins(f"s_addc_u32 s{sX+1}, s{sP+11}, 0")
        e.ins(f"s_add_u32 s{sWQ}, s{sP+16}, s{sT1}")
        e.ins(f"s_addc_u32 s{sWQ+1}, s{sP+17}, 0")
        e.ins(f"s_mov_b32 s{sY}, s{sWS}")
        e.ins(f"s_mov_b32 s{sY+1}, s{sWS+1}")
        e.ins(f"s_mov_b32 s{sC}, {f32bits(C):#x}")
        e.ins(f"s_mov_b32 s{sMASK}, 0xffff0000")
        e.ins(f"s_mov_b32 s{sSELLO}, 0x05040100")
        e.ins(f"s_mov_b32 s{sSELHI}, 0x07060302")
        e.ins(f"s_mov_b32 s{sCM}, 0xcccccccc")
        e.ins(f"s_mov_b32 s{sCM+1}, 0xcccccccc")
        e.ins(f"s_mov_b32 s{sPROB}, 0")
        e.ins(f"s_mov_b32 s{sCC}, 0")
        if fb:
            e.ins(f"s_movk_i32 s{sDB+2}, 0x100")
            e.ins(f"s_mov_b32 s{sDB+3}, 0x00020000")
            e.ins(f"s_bfe_u32 s{sDO}, s{sWG}, 0x20003")
            e.ins(f"s_lshl_b32 s{sDO}, s{sDO}, 6")
            e.ins(f"v_mov_b32 v{vONE}, 0x01010101")
            e.ins(f"s_mov_b32 s{sMODE}, 0")
            e.ins(f"v_mov_b32 v{vMDA}, {LDS_MODE:#x}")
            e.ins(f"v_mov_b32 v{vMD}, 0")
            e.ins(f"ds_write_b32 v{vMDA}, v{vMD}")
        elif fb3:
            e.ins(f"s_movk_i32 s{sDB+2}, 0x100")
            e.ins(f"s_mov_b32 s{sDB+3}, 0x00020000")
            e.ins(f"s_and_b32 s{sDO}, s{sWG}, 7")
            e.ins(f"v_cmp_eq_u32 vcc, s{sDO}, v{vLANE}")
            e.ins(f"s_lshl_b32 s{sDO}, s{sDO}, 8")
            e.ins(f"s_add_u32 s{sDO}, s{sDO}, {MODE_OFF:#x}")
            e.ins(f"s_mov_b32 s{sMODE}, 0")
            e.ins(f"v_cndmask_b32 v{vONE}, 0, 1, vcc")
            e.ins(f"s_lshr_b32 s{sLEAD}, s{sWG}, 3")
            e.ins(f"v_mov_b32 v{vMDA}, {LDS_MODE:#x}")
            e.ins(f"v_mov_b32 v{vAT}, 0")
            e.ins(f"ds_write_b32 v{vMDA}, v{vAT}")
            e.ins(f"s_or_b32 s{sT0}, s{sLEAD}, s{sWAVE}")
            e.ins("s_cbranch_scc1 L_noinit")
            e.ins("s_mov_b64 exec, 1")
            e.ins(f"buffer_store_dword v{vAT}, off, {sr(sY,4)}, s{sDO}")
            e.ins("s_mov_b64 exec, -1")
            e.label("L_noinit")
        elif ctl == "even":
            e.ins(f"s_getreg_b32 s{sMODE}, hwreg(HW_REG_XCC_ID, 0, 1)")
            e.ins(f"s_xor_b32 s{sMODE}, s{sMODE}, 1")
        elif ctl:
            e.ins(f"s_and_b32 s{sMODE}, s{sWG}, {int(ctl)}")
        e.ins(f"s_mov_b32 s{sSO}, 0")
        e.ins(f"s_lshl_b32 s{sM0N}, s{sWAVE}, 14")
        e.ins(f"v_add_u32 v{vWQ1}, 0x2000, v{vWQ0}")
        e.ins(f"v_lshrrev_b32 v{vT0}, 3, v{vLANE}")
        e.ins(f"v_and_b32 v{vT1}, 7, v{vLANE}")
        e.ins(f"v_and_b32 v{vT2}, 2, v{vT0}")
        e.ins(f"v_lshlrev_b32 v{vT0}, 10, v{vT0}")
        e.ins(f"v_xor_b32 v{vT1}, v{vT1}, v{vT2}")
        e.ins(f"v_lshl_add_u32 v{vT0}, v{vT1}, 4, v{vT0}")
        e.ins(f"s_lshl_b32 s{sT0}, s{sWAVE}, 7")
        e.ins(f"v_add_u32 v{vWOE}, s{sT0}, v{vT0}")
        e.ins(f"v_xor_b32 v{vWOO}, 64, v{vWOE}")
        e.ins(f"v_lshrrev_b32 v{vT0}, 4, v{vLANE}")
        e.ins(f"v_bfe_u32 v{vT1}, v{vLANE}, 2, 2")
        e.ins(f"v_lshl_add_u32 v{vT1}, v{vT0}, 3, v{vT1}")
        e.ins(f"v_lshlrev_b32 v{vT1}, 7, v{vT1}")
        e.ins(f"v_bfe_u32 v{vT2}, v{vLANE}, 3, 2")
        e.ins(f"v_lshl_add_u32 v{vT1}, v{vT2}, 5, v{vT1}")
        e.ins(f"v_and_b32 v{vT2}, 3, v{vLANE}")
        e.ins(f"v_lshl_add_u32 v{vT1}, v{vT2}, 3, v{vT1}")
        e.ins(f"v_add_u32 v{vA[0]}, s{sM0N}, v{vT1}")
        for t in range(1, 4):
            e.ins(f"v_xor_b32 v{vA[t]}, {t<<5}, v{vA[0]}")
        e.ins(f"v_and_b32 v{vT1}, 15, v{vLANE}")
        e.ins(f"v_lshlrev_b32 v{vT2}, 5, v{vT1}")
        e.ins(f"v_lshl_add_u32 v{vT2}, v{vT0}, 3, v{vT2}")
        e.ins(f"v_add_u32 v{vQRA}, {LDS_QW:#x}, v{vT2}")
        e.ins(f"s_lshl_b32 s{sT0}, s{sWAVE}, 9")
        e.ins(f"v_add_u32 v{vQWA}, s{sT0}, v{vQRA}")
        e.ins(f"v_lshlrev_b32 v{vT2}, 4, v{vT1}")
        e.ins(f"v_lshl_add_u32 v{vT2}, v{vT0}, 2, v{vT2}")
        e.ins(f"s_mul_i32 s{sT0}, s{sWAVE}, {OA_STRIDE}")
        e.ins(f"s_add_u32 s{sT0}, s{sT0}, {LDS_OA:#x}")
        e.ins(f"v_add_u32 v{vOWA}, s{sT0}, v{vT2}")
        e.ins(f"v_mul_u32_u24 v{vT2}, {OA_STRIDE}, v{vT1}")
        e.ins(f"v_lshl_add_u32 v{vT2}, v{vT0}, 4, v{vT2}")
        e.ins(f"v_add_u32 v{vAFA}, {LDS_OA:#x}, v{vT2}")
        e.ins(f"s_lshl_b32 s{sT0}, s{sWAVE}, 3")
        e.ins(f"s_add_u32 s{sT0}, s{sT0}, {LDS_ML:#x}")
        e.ins(f"v_mov_b32 v{vMWA}, s{sT0}")
        e.ins(f"v_and_b32 v{vT2}, 1, v{vT0}")
        e.ins(f"v_lshlrev_b32 v{vT2}, 5, v{vT2}")
        e.ins(f"v_add_u32 v{vMLA}, {LDS_ML:#x}, v{vT2}")
        e.ins(f"v_xor_b32 v{vMLB}, 32, v{vMLA}")
        e.ins(f"v_lshlrev_b32 v{vL4}, 2, v{vLANE}")
        e.ins(f"v_lshlrev_b32 v{vL16}, 4, v{vLANE}")
        e.ins(f"s_lshl_b32 s{sT0}, s{sB}, 3")
        e.ins(f"s_add_u32 s{sT0}, s{sT0}, s{sWAVE}")
        e.ins(f"s_mul_i32 s{sT0}, s{sT0}, {BLK}")
        e.ins(f"s_lshl_b32 s{sT1}, s{sH}, 2")
        e.ins(f"s_add_u32 s{sT1}, s{sT1}, s{sQD}")
        e.ins(f"s_lshl_b32 s{sMO}, s{sB}, 7")
        e.ins(f"s_add_u32 s{sMO}, s{sMO}, s{sT1}")
        e.ins(f"s_lshl_b32 s{sMO}, s{sMO}, 7")
        e.ins(f"s_add_u32 s{sMO}, s{sMO}, {ML_OFF:#x}")
        e.ins(f"s_and_b32 s{sT2}, s{sT1}, 15")
        e.ins(f"s_lshl_b32 s{sT2}, s{sT2}, 2")
        e.ins(f"s_bfe_u32 s{sT3}, s{sT1}, 0x20004")
        e.ins(f"s_add_u32 s{sT2}, s{sT2}, s{sT3}")
        e.ins(f"s_and_b32 s{sT3}, s{sT1}, 64")
        e.ins(f"s_add_u32 s{sT2}, s{sT2}, s{sT3}")
        e.ins(f"s_lshl_b32 s{sT2}, s{sT2}, 8")
        e.ins(f"s_add_u32 s{sYO}, s{sT2}, s{sT0}")
        for i in range(8):
            e.ins(f"v_mov_b32 v{vQA+i}, 0")
        for i in range(8):
            e.wait(("pro", i), ("wq", 2 * i + 1))
            if i == 7:
                stamp(e, 2)
            qpair(e, vBF + 8 * i, vBF + 8 * i + 4, vW + i, vQA)
        rowreduce8(e, vQA, vU, vU + 1)
        e.ins(f"ds_write_b64 v{vQWA}, {vr(vU,2)}")
        e.ins("s_waitcnt lgkmcnt(0)")
        e.ins("s_barrier")
        for w in range(8):
            e.ins(f"ds_read_b64 {vr(vS+2*w,2)}, v{vQRA} offset:{w*512}")
        e.ins(f"v_add_u32 v{vQWA}, 0x1000, v{vQWA}")
        e.ins(f"v_add_u32 v{vQRA}, 0x1000, v{vQRA}")
        e.ins("s_waitcnt lgkmcnt(0)")
        q_final(e)
        stamp(e, 3)

    def ctl_hook(e, name, i, b):
        if fb3 and name not in ("k0", "v8"):
            if i == 0:
                e.ins(f"s_and_b32 s{sT0}, s{sCC}, 7")
                e.ins(f"s_cmp_lg_u32 s{sT0}, s{sWAVE}")
                e.ins(f"s_cbranch_scc1 L_c0{name}")
                if "l" in cx:
                    e.ins(f"buffer_load_dword v{vAT2}, off, {sr(sY,4)}, s{sDO}{mdf}")
                else:
                    e.ins(f"v_mov_b32 v{vAT2}, 0")
                e.ins(f"s_cmp_lg_u32 s{sLEAD}, 0")
                e.ins(f"s_cbranch_scc1 L_c0{name}")
                e.ins(f"v_mov_b32 v{vAT}, -1")
                e.ins("s_mov_b64 exec, 0xff")
                e.ins(f"v_mov_b32 v{vAT}, v{vONE}")
                if "a" in cx:
                    e.ins(f"buffer_atomic_add v{vAT}, v{vL4}, {sr(sDB,4)}, 0 offen sc0 sc1")
                if "p" in cx:
                    e.ins(f"buffer_load_dword v{vAT}, v{vL4}, {sr(sDB,4)}, 0 offen {pf}")
                    e.ins(f"s_add_u32 s{sT0}, s{sCC}, 1")
                    e.ins(f"s_lshl_b32 s{sT1}, s{sWG}, 2")
                    e.ins(f"v_mov_b32 v{vMD}, s{sT0}")
                    e.ins("s_mov_b64 exec, 1")
                    e.ins(f"buffer_store_dword v{vMD}, off, {sr(sDB,4)}, s{sT1} {pf}")
                e.ins("s_mov_b64 exec, -1")
                e.label(f"L_c0{name}")
            if i == 5:
                e.ins(f"s_and_b32 s{sT0}, s{sCC}, 7")
                e.ins(f"s_cmp_lg_u32 s{sT0}, s{sWAVE}")
                e.ins(f"s_cbranch_scc1 L_c7{name}")
                e.ins(f"s_cmp_lg_u32 s{sLEAD}, 0")
                e.ins(f"s_cbranch_scc1 L_c6{name}")
                e.ins(f"s_add_u32 s{sT0}, s{sCC}, {1 - theta}")
                e.ins(f"s_max_i32 s{sT0}, s{sT0}, 0")
                for st in (8, 4, 2, 1):
                    e.ins(f"v_min_u32_dpp v{vAT}, v{vAT}, v{vAT} row_ror:{st} row_mask:0xf bank_mask:0xf")
                e.ins(f"v_cmp_gt_u32 vcc, s{sT0}, v{vAT}")
                e.ins(f"v_cndmask_b32 v{vAT2}, 0, 1, vcc")
                e.ins("s_mov_b64 exec, 1")
                if "s" in cx:
                    e.ins(f"buffer_store_dword v{vAT2}, off, {sr(sY,4)}, s{sDO}")
                e.label(f"L_c6{name}")
                e.ins("s_mov_b64 exec, 1")
                e.ins(f"ds_write_b32 v{vMDA}, v{vAT2}")
                e.ins("s_mov_b64 exec, -1")
                e.label(f"L_c7{name}")
                e.ins(f"s_add_u32 s{sCC}, s{sCC}, 1")
            if i == 7:
                e.ins(f"ds_read_b32 v{vMD}, v{vMDA}")
            return
        if not fb or name in ("k0", "v8"):
            return
        if i == 0:
            e.ins(f"s_and_b32 s{sT0}, s{sCC}, 7")
            e.ins(f"s_cmp_lg_u32 s{sT0}, s{sWAVE}")
            e.ins(f"s_cbranch_scc1 L_c0{name}")
            if fb2:
                e.ins(f"buffer_load_dword v{vAT}, v{vL4}, {sr(sDB,4)}, 0 offen sc1")
                e.ins(f"v_mov_b32 v{vAT2}, s{sCC}")
                e.ins("s_mov_b64 exec, 1")
                e.ins(f"buffer_store_byte v{vAT2}, v{vL4}, {sr(sDB,4)}, s{sWG} offen sc1")
            else:
                e.ins("s_mov_b64 exec, 1")
                e.ins(f"v_mov_b32 v{vAT}, 1")
                e.ins(f"buffer_atomic_add v{vAT}, v{vL4}, {sr(sDB,4)}, s{sDO} offen sc0 sc1")
            e.ins("s_mov_b64 exec, -1")
            e.label(f"L_c0{name}")
        if i == 6:
            e.ins(f"ds_read_b32 v{vMD}, v{vMDA}")
        if i == 7:
            e.ins(f"s_and_b32 s{sT0}, s{sCC}, 7")
            e.ins(f"s_cmp_lg_u32 s{sT0}, s{sWAVE}")
            e.ins(f"s_cbranch_scc1 L_c7{name}")
            if fb2:
                e.ins(f"v_dot4_u32_u8 v{vAT}, v{vAT}, v{vONE}, 0")
                e.ins(f"s_lshl_b32 s{sT0}, s{sCC}, 8")
                e.ins(f"s_sub_u32 s{sT0}, s{sT0}, {theta}")
                e.ins(f"s_max_i32 s{sT0}, s{sT0}, 0")
                for st in (8, 4, 2, 1):
                    e.ins(f"v_add_u32_dpp v{vAT}, v{vAT}, v{vAT} row_ror:{st} row_mask:0xf bank_mask:0xf")
                wave_allreduce(e, "v_add_u32", vAT, vAT2)
            else:
                e.ins(f"s_lshl_b32 s{sT0}, s{sCC}, 6")
                e.ins(f"s_add_u32 s{sT0}, s{sT0}, {theta}")
            e.ins("s_mov_b64 exec, 1")
            e.ins(f"v_cmp_gt_u32 vcc, s{sT0}, v{vAT}")
            e.ins(f"v_cndmask_b32 v{vAT}, 0, 1, vcc")
            e.ins(f"ds_write_b32 v{vMDA}, v{vAT}")
            e.ins("s_mov_b64 exec, -1")
            e.label(f"L_c7{name}")
            e.ins(f"s_add_u32 s{sCC}, s{sCC}, 1")

    def ctl_fetch(e, name, b):
        if fb3 and name not in ("k0", "v8"):
            e.ins("s_waitcnt lgkmcnt(0)")
            e.ins(f"v_readfirstlane_b32 s{sMODE}, v{vMD}")
        if fb and name not in ("k0", "v8"):
            e.ins("s_waitcnt lgkmcnt(0)")
            e.ins(f"v_readfirstlane_b32 s{sMODE}, v{vMD}")

    def k_body(e, name, b, fin, P):
        g0 = 8 * b
        for i in range(8):
            e.wait((name, i), ("r", g0 + i))
            steady_issue(e, g0, i, fin, P)
            ctl_hook(e, name, i, b)
            R0 = slot(i)
            e.ins(f"v_dot2_f32_bf16 v{vS+i}, v{R0}, v{vQ}, 0")
            for kk in range(1, 4):
                e.ins(f"v_dot2_f32_bf16 v{vS+i}, v{R0+kk}, v{vQ+kk}, v{vS+i}")
            if touch and name == "k0" and i == 3:
                e.issue(f"buffer_load_dword v{vTCH}, off, {sr(sNX,4)}, 0{kf}")
            if i in (1, 5):
                e.ins(f"s_mov_b32 m0, s{sM0N}")
                e.ins(f"s_add_u32 s{sM0N}, s{sM0N}, 0x400")
                e.issue(f"buffer_load_dwordx4 v{vWOE if i == 1 else vWOO}, {sr(sWO,4)}, s{sSO} offen{wf} lds", ("dma", b, i))
                e.ins(f"s_add_u32 s{sSO}, s{sSO}, 0x2000")
            if i in (2, 4, 6):
                e.ins(f"v_add_f32_dpp v{vS+i-2}, v{vS+i-2}, v{vS+i-2} row_ror:8 row_mask:0xf bank_mask:0x3")
                e.ins(f"v_add_f32_dpp v{vS+i-2}, v{vS+i-1}, v{vS+i-1} row_ror:8 row_mask:0xf bank_mask:0xc")
            if i == 5:
                e.ins(f"v_add_f32_dpp v{vS}, v{vS}, v{vS} row_shl:4 row_mask:0xf bank_mask:0x5")
                e.ins(f"v_add_f32_dpp v{vS}, v{vS+2}, v{vS+2} row_shr:4 row_mask:0xf bank_mask:0xa")
            if i == 6:
                e.ins(f"v_add_f32_dpp v{vS}, v{vS}, v{vS} quad_perm:[2,3,0,1] row_mask:0xf bank_mask:0xf")
        for r in range(7, 4, -1):
            e.ins(f"v_mov_b32 v{vSC+r}, v{vSC+r-1}")
        e.ins(f"v_add_f32_dpp v{vS+6}, v{vS+6}, v{vS+6} row_ror:8 row_mask:0xf bank_mask:0x3")
        e.ins(f"v_add_f32_dpp v{vS+6}, v{vS+7}, v{vS+7} row_ror:8 row_mask:0xf bank_mask:0xc")
        e.ins(f"v_add_f32_dpp v{vS+4}, v{vS+4}, v{vS+4} row_shl:4 row_mask:0xf bank_mask:0x5")
        e.ins(f"v_mov_b32 v{vSC+4}, v{vSC+3}")
        e.ins(f"v_add_f32_dpp v{vS+4}, v{vS+6}, v{vS+6} row_shr:4 row_mask:0xf bank_mask:0xa")
        e.ins(f"v_mov_b32 v{vSC+3}, v{vSC+2}")
        e.ins(f"v_mov_b32 v{vSC+2}, v{vSC+1}")
        e.ins(f"v_add_f32_dpp v{vS+4}, v{vS+4}, v{vS+4} quad_perm:[2,3,0,1] row_mask:0xf bank_mask:0xf")
        e.ins(f"v_mov_b32 v{vSC+1}, v{vSC}")
        e.ins(f"v_cndmask_b32 v{vS}, v{vS}, v{vS+4}, {sr(sCM,2)}")
        ctl_fetch(e, name, b)
        e.ins(f"s_add_u32 s{sCNT}, s{sCNT}, 1")
        e.ins(f"s_cmp_lt_u32 s{sCNT}, 8")
        e.ins(f"v_add_f32_dpp v{vSC}, v{vS}, v{vS} quad_perm:[1,0,3,2] row_mask:0xf bank_mask:0xf")

    def b_k0(e, b):
        e.raw(".p2align 4")
        e.label("L_prob")
        e.ins(f"s_mov_b32 s{sCNT}, 0")
        k_body(e, "k0", b, F0 if b == 0 else 8, PH)

    def b_ks(e, b, lo=False):
        if not PL:
            e.label("L_ks")
            k_body(e, "ks", b, ENTRY, PH)
            e.ins("s_cbranch_scc1 L_ks")
        elif not lo:
            e.label("L_ks")
            e.ins(f"s_cmp_lg_u32 s{sMODE}, 0")
            e.ins("s_cbranch_scc1 L_ksl")
            k_body(e, "ks", b, ENTRY, PH)
            e.ins("s_cbranch_scc1 L_ks")
            e.ins("s_branch L_kv")
        else:
            e.label("L_ksl")
            k_body(e, "ksl", b, ENTRY, PL)
            e.ins("s_cbranch_scc1 L_ks")
            e.label("L_kv")

    def b_kv(e, b):
        stamp(e, 4)
        e.ins(f"v_max3_f32 v{vM}, v{vSC}, v{vSC+1}, v{vSC+2}")
        e.ins(f"v_max3_f32 v{vT0}, v{vSC+3}, v{vSC+4}, v{vSC+5}")
        e.ins(f"v_max3_f32 v{vM}, v{vSC+6}, v{vSC+7}, v{vM}")
        e.ins(f"v_max_f32 v{vM}, v{vM}, v{vT0}")
        wqn_issue(e, ("wqn", b))
        for st in (8, 4, 2):
            e.ins(f"v_max_f32_dpp v{vM}, v{vM}, v{vM} row_ror:{st} row_mask:0xf bank_mask:0xf")
        wave_allreduce(e, "v_max_f32", vM, vT0)
        e.ins(f"v_mul_f32 v{vM}, s{sC}, v{vM}")
        for r in range(8):
            e.ins(f"v_fma_f32 v{vSC+r}, v{vSC+r}, s{sC}, -v{vM}")
        for r in range(8):
            e.ins(f"v_exp_f32 v{vSC+r}, v{vSC+r}")
        for i in range(8):
            e.ins(f"v_mov_b32 v{vACC+i}, 0")
        for i in range(8):
            e.ins(f"v_mov_b32 v{vQA+i}, 0")
        e.ins(f"v_add_f32 v{vL}, v{vSC}, v{vSC+1}")
        for r in range(2, 8):
            e.ins(f"v_add_f32 v{vL}, v{vL}, v{vSC+r}")
        e.wait(("kv", 0), ("dma", b - 1, 5))
        for s in range(4):
            for t in range(4):
                for h in range(2):
                    e.ins(f"ds_read_b64_tr_b16 {vr(vBF+16*s+4*t+2*h,2)}, v{vA[t]} offset:{4096*s+512*h}")
        e.ins(f"s_mov_b32 s{sNX}, s{sKN}")
        e.ins(f"s_mov_b32 s{sNX+1}, s{sKN+1}")
        e.ins(f"s_mov_b32 s{sNX+2}, s{sKN+2}")
        if touch:
            e.issue(f"buffer_load_dword v{vTCH}, off, {sr(sNX,4)}, 0{kf}")
        e.ins(f"s_mov_b32 s{sCNT}, 0")

    def v_body(e, name, b, late, P=None):
        g0 = 8 * b
        for i in range(8):
            e.wait((name, i), ("r", g0 + i))
            if not late:
                steady_issue(e, g0, i, ENTRY, P)
            ctl_hook(e, name, i, b)
            R0 = slot(i)
            e.ins(f"v_mov_b32_dpp v{vP}, v{vSC+7} row_newbcast:{KEYLANE[i]} row_mask:0xf bank_mask:0xf")
            for k in range(4):
                e.ins(f"v_lshlrev_b32 v{vU+2*k}, 16, v{R0+k}")
                e.ins(f"v_and_b32 v{vU+2*k+1}, s{sMASK}, v{R0+k}")
            if late:
                ring_issue(e, g0 + i + 8)
            for k in range(4):
                e.ins(f"v_pk_fma_f32 {vr(vACC+2*k,2)}, {vr(vU+2*k,2)}, {vr(vP,2)}, {vr(vACC+2*k,2)} op_sel_hi:[1,0,1]")
            if i == 4:
                e.wait((name, "q"), ("wqn", b))
                qpair(e, vW, vW + 4, vXP, vQA)
                wqn_issue(e, ("wqn", b + 1))
        for r in range(7, 0, -1):
            e.ins(f"v_mov_b32 v{vSC+r}, v{vSC+r-1}")
        ctl_fetch(e, name, b)
        e.ins(f"s_add_u32 s{sCNT}, s{sCNT}, 1")

    def b_vs(e, b, lo=False):
        if not lo:
            e.label("L_vs")
            if PL:
                e.ins(f"s_cmp_lg_u32 s{sMODE}, 0")
                e.ins("s_cbranch_scc1 L_vsl")
            v_body(e, "vs", b, False, PH)
        else:
            e.label("L_vsl")
            v_body(e, "vsl", b, False, PL)
        e.ins(f"s_cmp_lt_u32 s{sCNT}, {8 - nboost}")
        e.ins("s_cbranch_scc1 L_vs")
        if PL and not lo:
            e.ins("s_branch L_burst")
        if lo:
            e.label("L_burst")

    def b_burst(e, b):
        for g in range(8 * b + ENTRY, 8 * b + 8):
            ring_issue(e, g)

    def b_v8(e, b):
        e.label("L_v8")
        v_body(e, "v8", b, True)
        e.ins(f"s_cmp_lt_u32 s{sCNT}, 8")
        e.ins("s_cbranch_scc1 L_v8")

    def b_epi(e, prob):
        stamp(e, 5)
        for st in (8, 4, 2):
            e.ins(f"v_add_f32_dpp v{vL}, v{vL}, v{vL} row_ror:{st} row_mask:0xf bank_mask:0xf")
        rowreduce8(e, vACC, vU, vU + 1)
        e.ins(f"v_cvt_pk_bf16_f32 v{vU+2}, v{vU}, v{vU+1}")
        wave_allreduce(e, "v_add_f32", vL, vT0)
        e.ins(f"v_lshlrev_b32 v{vU+4}, 16, v{vU+2}")
        e.ins(f"v_and_b32 v{vU+5}, s{sMASK}, v{vU+2}")
        e.ins(f"v_sub_f32 v{vU+4}, v{vU}, v{vU+4}")
        e.ins(f"v_sub_f32 v{vU+5}, v{vU+1}, v{vU+5}")
        e.ins(f"ds_write_b32 v{vOWA}, v{vU+2}")
        e.ins(f"v_cvt_pk_bf16_f32 v{vU+3}, v{vU+4}, v{vU+5}")
        e.ins(f"ds_write_b32 v{vOWA}, v{vU+3} offset:{8*OA_STRIDE}")
        e.ins("s_mov_b64 exec, 1")
        e.ins(f"ds_write_b64 v{vMWA}, {vr(vM,2)}")
        e.ins("s_mov_b64 exec, -1")
        e.ins(f"s_cmp_lg_u32 s{sPROB}, 0")
        e.ins("s_cbranch_scc1 L_noq1")
        rowreduce8(e, vQA, vU + 6, vU + 7)
        e.ins(f"ds_write_b64 v{vQWA}, {vr(vU+6,2)}")
        e.ins("s_branch L_noq2")
        e.label("L_noq1")
        e.ins(f"s_sub_u32 s{sT0}, s{sYO}, {16*BLK:#x}")
        e.ins(f"buffer_store_dword v{vYA}, v{vL4}, {sr(sY,4)}, s{sT0} offen{stf}")
        e.label("L_noq2")
        e.ins("s_waitcnt lgkmcnt(0)")
        e.ins("s_barrier")
        for s in range(4):
            e.ins(f"ds_read_b128 {vr(vAF+4*s,4)}, v{vAFA} offset:{64*s}")
        e.ins(f"ds_read_b128 {vr(vML,4)}, v{vMLA}")
        e.ins(f"ds_read_b128 {vr(vML+4,4)}, v{vMLA} offset:16")
        e.ins(f"ds_read_b128 {vr(vML+8,4)}, v{vMLB}")
        e.ins(f"ds_read_b128 {vr(vML+12,4)}, v{vMLB} offset:16")
        for s in range(4):
            e.ins(f"s_waitcnt lgkmcnt({7-s})")
            for t in range(4):
                c = "0" if s == 0 else vr(vD + 4 * t, 4)
                e.ins(f"v_mfma_f32_16x16x32_bf16 {vr(vD+4*t,4)}, {vr(vAF+4*s,4)}, {vr(vBF+16*s+4*t,4)}, {c}")
        e.ins("s_waitcnt lgkmcnt(0)")
        e.ins(f"v_max3_f32 v{vT0}, v{vML}, v{vML+2}, v{vML+4}")
        e.ins(f"v_max3_f32 v{vT0}, v{vML+6}, v{vML+8}, v{vT0}")
        e.ins(f"v_max3_f32 v{vT0}, v{vML+10}, v{vML+12}, v{vT0}")
        e.ins(f"v_max_f32 v{vM}, v{vML+14}, v{vT0}")
        for r in range(8):
            e.ins(f"v_sub_f32 v{vSL+r}, v{vML+2*r}, v{vM}")
        for r in range(8):
            e.ins(f"v_exp_f32 v{vSL+r}, v{vSL+r}")
        for t in range(4):
            e.ins(f"v_mul_f32 v{vU+t}, v{vSL}, v{vD+4*t}")
        for r in range(1, 4):
            for t in range(4):
                e.ins(f"v_fmac_f32 v{vU+t}, v{vSL+r}, v{vD+4*t+r}")
        e.ins(f"v_mul_f32 v{vL}, v{vSL}, v{vML+1}")
        e.ins(f"v_permlane32_swap_b32 v{vU}, v{vU+2}")
        e.ins(f"v_permlane32_swap_b32 v{vU+1}, v{vU+3}")
        e.ins(f"v_fmac_f32 v{vL}, v{vSL+1}, v{vML+3}")
        e.ins(f"v_add_f32 v{vU}, v{vU}, v{vU+2}")
        e.ins(f"v_add_f32 v{vU+1}, v{vU+1}, v{vU+3}")
        e.ins(f"v_fmac_f32 v{vL}, v{vSL+2}, v{vML+5}")
        e.ins(f"v_fmac_f32 v{vL}, v{vSL+3}, v{vML+7}")
        e.ins(f"v_permlane16_swap_b32 v{vU}, v{vU+1}")
        e.ins(f"v_add_f32 v{vU}, v{vU}, v{vU+1}")
        e.ins(f"s_cmp_lg_u32 s{sPROB}, 0")
        e.ins("s_cbranch_scc0 L_keep")
        e.ins(f"buffer_store_dword v{vU}, v{vL4}, {sr(sY,4)}, s{sYO} offen{stf}")
        e.ins(f"s_cmp_lg_u32 s{sWAVE}, 0")
        e.ins("s_cbranch_scc1 L_fin")
        for r in range(4, 8):
            e.ins(f"v_fmac_f32 v{vL}, v{vSL+r}, v{vML+2*r+1}")
        e.ins("s_mov_b64 exec, 0xff")
        e.ins(f"buffer_store_dwordx4 {vr(vMA,4)}, v{vL16}, {sr(sY,4)}, s{sMO} offen{stf}")
        e.ins("s_branch L_fin")
        e.label("L_keep")
        for r in range(4, 8):
            e.ins(f"v_fmac_f32 v{vL}, v{vSL+r}, v{vML+2*r+1}")
        e.ins(f"v_mov_b32 v{vYA}, v{vU}")
        e.ins(f"v_mov_b32 v{vMA}, v{vM}")
        e.ins(f"v_mov_b32 v{vMA+1}, v{vL}")
        for w in range(8):
            e.ins(f"ds_read_b64 {vr(vS+2*w,2)}, v{vQRA} offset:{w*512}")
        e.ins(f"s_mov_b32 s{sPROB}, 1")
        e.ins(f"s_mov_b32 s{sNX}, s{sVB}")
        e.ins(f"s_mov_b32 s{sNX+1}, s{sVB+1}")
        e.ins(f"s_mov_b32 s{sKN+2}, 0")
        e.ins(f"s_mov_b32 s{sWQ+2}, 0")
        e.ins(f"s_mov_b32 s{sX+2}, 0")
        e.ins(f"s_mov_b32 s{sWO}, s{sP+18}")
        e.ins(f"s_mov_b32 s{sWO+1}, s{sP+19}")
        e.ins(f"s_mov_b32 s{sSO}, 0")
        e.ins(f"s_lshl_b32 s{sM0N}, s{sWAVE}, 14")
        e.ins(f"s_add_u32 s{sYO}, s{sYO}, {16*BLK:#x}")
        e.ins(f"v_add_u32 v{vOWA}, {OA_SIZE:#x}, v{vOWA}")
        e.ins(f"v_add_u32 v{vAFA}, {OA_SIZE:#x}, v{vAFA}")
        e.ins(f"v_add_u32 v{vMWA}, 64, v{vMWA}")
        e.ins(f"v_add_u32 v{vMLA}, 64, v{vMLA}")
        e.ins(f"v_add_u32 v{vMLB}, 64, v{vMLB}")
        e.ins("s_waitcnt lgkmcnt(0)")
        q_final(e)
        stamp(e, 6)
        e.ins("s_nop 1")
        e.ins("s_branch L_prob")
        e.label("L_fin")

    assert vL == vM + 1 and vM % 2 == 0

    import random
    rnd = random.Random(1)
    N = {}
    for trial in range(200 if PL else 1):
        pick = (lambda: False) if not PL else (lambda: True) if trial == 0 else (lambda: False) if trial == 1 else \
            (lambda: rnd.random() < 0.5)
        sim = Sim()
        sim.N = N
        b_prologue(sim)
        for prob in range(2):
            b0 = 16 * prob
            b_k0(sim, b0)
            for b in range(1, 8):
                b_ks(sim, b0 + b, pick())
            b_kv(sim, b0 + 8)
            for b in range(8, 16 - nboost):
                b_vs(sim, b0 + b, pick())
            b_burst(sim, b0 + 16 - nboost)
            for b in range(16 - nboost, 16):
                b_v8(sim, b0 + b)
            b_epi(sim, prob)
    e = Emit(a, N)
    assert F0 == 8
    b_prologue(e)
    b_k0(e, 0)
    b_ks(e, 1)
    if PL:
        b_ks(e, 1, True)
    b_kv(e, 8)
    b_vs(e, 8)
    if PL:
        b_vs(e, 8, True)
    b_burst(e, 16 - nboost)
    b_v8(e, 14)
    b_epi(e, 0)
    if diag:
        a("s_mov_b64 exec, 1")
        a("s_waitcnt vmcnt(0)")
        a(f"s_memrealtime {sr(sST+14,2)}")
        a(f"s_add_u32 s80, s{sWS}, 0x400000")
        a(f"s_addc_u32 s81, s{sWS+1}, 0")
        a("s_mov_b32 s82, 0x100000")
        a("s_mov_b32 s83, 0x00020000")
        a(f"s_lshl_b32 s{sT0}, s{sWG}, 3")
        a(f"s_add_u32 s{sT0}, s{sT0}, s{sWAVE}")
        a(f"s_lshl_b32 s{sT0}, s{sT0}, 5")
        a(f"s_getreg_b32 s{sT1}, hwreg(HW_REG_XCC_ID)")
        a("s_waitcnt lgkmcnt(0)")
        for i, si in enumerate((0, 1, 2, 3, 5, 7)):
            a(f"v_mov_b32 v{vACC+i}, s{sST+2*si}")
        a(f"v_mov_b32 v{vACC+6}, s{sT1}")
        a(f"v_mov_b32 v{vACC+7}, s{sST+12}")
        a(f"buffer_store_dwordx4 {vr(vACC,4)}, v{vL4}, s[80:83], s{sT0} offen")
        a(f"buffer_store_dwordx4 {vr(vACC+4,4)}, v{vL4}, s[80:83], s{sT0} offen offset:16")
    a.label("L_attn_end")
    a("s_endpgm")
    return a, NSGPR, N


def gen_reduce(diag=False):
    a = Asm()
    a.valloc(1)
    vLANE, vOFF, vT0, vT1, vWg, vLA = [a.valloc() for _ in range(6)]
    vML = a.valloc(2, 2)
    vACC = a.valloc(4, 4)
    vY = a.valloc(64, 4)
    a.label("reduce_kernel")
    a("s_cmp_ge_u32 s2, 32")
    a("s_cbranch_scc1 L_red_end")
    if diag:
        a("s_memrealtime s[24:25]")
    a("s_load_dwordx2 s[4:5], s[0:1], 80")
    a("s_load_dwordx2 s[6:7], s[0:1], 96")
    a(f"s_mul_i32 s3, s2, {BLK}")
    a(f"v_and_b32 v{vLANE}, 63, v0")
    a(f"v_lshrrev_b32 v{vT0}, 6, v0")
    a(f"v_lshlrev_b32 v{vOFF}, 4, v{vLANE}")
    a(f"v_lshl_add_u32 v{vOFF}, v{vT0}, 14, v{vOFF}")
    a(f"v_readfirstlane_b32 s22, v{vT0}")
    a(f"v_lshlrev_b32 v{vT1}, 7, v0")
    a("s_bfe_u32 s19, s2, 0x10003")
    a("s_lshl_b32 s19, s19, 14")
    a("s_lshr_b32 s21, s2, 4")
    a("s_lshl_b32 s21, s21, 3")
    a("s_add_u32 s19, s19, s21")
    a(f"s_add_u32 s19, s19, {ML_OFF:#x}")
    a("s_sub_u32 s19, s19, s3")
    a(f"s_sub_u32 s10, {ML_OFF + 256 * 128:#x}, s3")
    a("s_mov_b32 s11, 0x00020000")
    a("s_mov_b32 s14, 4096")
    a("s_mov_b32 s15, 0x00020000")
    a("s_movk_i32 s16, 0x1000")
    a("s_movk_i32 s17, 0x2000")
    a("s_movk_i32 s18, 0x3000")
    a("s_waitcnt lgkmcnt(0)")
    a("s_add_u32 s8, s6, s3")
    a("s_addc_u32 s9, s7, 0")
    a(f"buffer_load_dwordx2 {vr(vML,2)}, v{vT1}, s[8:11], s19 offen")
    for i in range(16):
        so = "0" if i < 4 else f"s{15 + i // 4}"
        a(f"buffer_load_dwordx4 {vr(vY+4*i,4)}, v{vOFF}, s[8:11], {so} offen offset:{(i%4)*1024}")
    a("s_mov_b32 s12, s4")
    a("s_mov_b32 s13, s5")
    a("s_bfe_u32 s20, s2, 0x10003")
    a("s_lshl_b32 s20, s20, 11")
    a("s_lshr_b32 s21, s2, 4")
    a("s_lshl_b32 s21, s21, 10")
    a("s_add_u32 s20, s20, s21")
    a("s_and_b32 s21, s2, 7")
    a("s_lshl_b32 s21, s21, 7")
    a("s_add_u32 s20, s20, s21")
    a(f"v_and_b32 v{vT0}, 15, v{vLANE}")
    a(f"v_lshrrev_b32 v{vT1}, 4, v{vLANE}")
    a(f"v_lshl_add_u32 v{vOFF}, v{vT0}, 2, v{vT1}")
    a(f"v_lshlrev_b32 v{vOFF}, 1, v{vOFF}")
    a(f"v_lshlrev_b32 v{vLA}, 2, v{vLANE}")
    for k in range(4):
        a(f"v_mov_b32 v{vACC+k}, 0")
    a("s_waitcnt vmcnt(16)")
    a(f"v_max_f32_dpp v{vT0}, v{vML}, v{vML} quad_perm:[1,0,3,2] row_mask:0xf bank_mask:0xf")
    a(f"v_max_f32_dpp v{vT0}, v{vT0}, v{vT0} quad_perm:[2,3,0,1] row_mask:0xf bank_mask:0xf")
    a(f"v_sub_f32 v{vWg}, v{vML}, v{vT0}")
    a(f"v_exp_f32 v{vWg}, v{vWg}")
    a(f"v_mul_f32 v{vT0}, v{vWg}, v{vML+1}")
    a(f"v_add_f32_dpp v{vT0}, v{vT0}, v{vT0} quad_perm:[1,0,3,2] row_mask:0xf bank_mask:0xf")
    a(f"v_add_f32_dpp v{vT0}, v{vT0}, v{vT0} quad_perm:[2,3,0,1] row_mask:0xf bank_mask:0xf")
    a(f"v_rcp_f32 v{vT0}, v{vT0}")
    a(f"v_mul_f32 v{vWg}, v{vWg}, v{vT0}")
    for i in range(16):
        a(f"s_waitcnt vmcnt({15-i})")
        for k in range(4):
            a(f"v_fmac_f32_dpp v{vACC+k}, v{vWg}, v{vY+4*i+k} row_newbcast:{i} row_mask:0xf bank_mask:0xf")
    a(f"v_permlane32_swap_b32 v{vACC}, v{vACC+2}")
    a(f"v_permlane32_swap_b32 v{vACC+1}, v{vACC+3}")
    a(f"v_add_f32 v{vACC}, v{vACC}, v{vACC+2}")
    a(f"v_add_f32 v{vACC+1}, v{vACC+1}, v{vACC+3}")
    a(f"v_permlane16_swap_b32 v{vACC}, v{vACC+1}")
    a(f"v_add_f32 v{vACC}, v{vACC}, v{vACC+1}")
    a("s_cmp_eq_u32 s22, 0")
    a("s_cbranch_scc1 L_red_w0")
    a(f"ds_write_b32 v{vLA}, v{vACC}")
    a("s_waitcnt lgkmcnt(0)")
    a("s_barrier")
    a("s_endpgm")
    a.label("L_red_w0")
    a("s_barrier")
    a(f"ds_read_b32 v{vT0}, v{vLA}")
    a("s_waitcnt lgkmcnt(0)")
    a(f"v_add_f32 v{vACC}, v{vACC}, v{vT0}")
    a(f"v_cvt_pk_bf16_f32 v{vACC}, v{vACC}, v{vACC}")
    a(f"buffer_store_short v{vACC}, v{vOFF}, s[12:15], s20 offen")
    if diag:
        a("s_waitcnt vmcnt(0)")
        a("s_memrealtime s[26:27]")
        a("s_add_u32 s28, s6, 0x410000")
        a("s_addc_u32 s29, s7, 0")
        a("s_mov_b32 s30, 0x100000")
        a("s_mov_b32 s31, 0x00020000")
        a("s_lshl_b32 s3, s2, 3")
        a("s_waitcnt lgkmcnt(0)")
        a(f"v_mov_b32 v{vACC}, s24")
        a(f"v_mov_b32 v{vACC+1}, s26")
        a(f"v_mov_b32 v{vT0}, 0")
        a("s_mov_b64 exec, 1")
        a(f"buffer_store_dwordx2 {vr(vACC,2)}, v{vT0}, s[28:31], s3 offen")
    a.label("L_red_end")
    a("s_endpgm")
    return a, 32


def build(**kw):
    a1, s1, N = gen_attn(**kw)
    a2, s2 = gen_reduce(kw.get("diag", False))
    k1 = NAME + "_kernel"
    out = HEADER
    out += f"; @launch kernel={k1} grid=(256,1,1) block=(512,1,1) lds={LDS_TOTAL}\n"
    out += "; @launch kernel=reduce_kernel grid=(32,1,1) block=(128,1,1) lds=256\n"
    out += '.amdgcn_target "amdgcn-amd-amdhsa--gfx950"\n.text\n'
    out += f".globl {k1}\n.p2align 8\n.type {k1},@function\n" + a1.text()
    out += ".globl reduce_kernel\n.p2align 8\n.type reduce_kernel,@function\n" + a2.text()
    out += '.section .rodata,"a"\n.p2align 6\n' + kd(k1, a1, s1) + ".p2align 6\n" + kd("reduce_kernel", a2, s2)
    return out, N


if __name__ == "__main__":
    import argparse
    ap = argparse.ArgumentParser()
    ap.add_argument("-o", default=f"cdna_kernels/{NAME}.s")
    ap.add_argument("--F", default="4")
    ap.add_argument("--kv", default="nt")
    ap.add_argument("--wf", default="nt")
    ap.add_argument("--diag", action="store_true")
    ap.add_argument("--map", default="p67501234")
    ap.add_argument("--noq", action="store_true")
    ap.add_argument("--pbar", action="store_true")
    ap.add_argument("--nboost", type=int, default=2)
    ap.add_argument("-v", action="store_true")
    ap.add_argument("--Flo", default=None)
    ap.add_argument("--ctl", default=None)
    ap.add_argument("--theta", type=int, default=32)
    ap.add_argument("--mdf", default="")
    ap.add_argument("--cx", default="las")
    ap.add_argument("--pf", default="sc1")
    ap.add_argument("--defer", action="store_true")
    ap.add_argument("--touch", action="store_true")
    ap.add_argument("--stf", default="")
    args = ap.parse_args()
    out, N = build(F=[int(x) for x in args.F.split(",")], kvflags=args.kv, wflags=args.wf, diag=args.diag, wmap=args.map, noq=args.noq,
                   nboost=args.nboost, pbar=args.pbar,
                   Flo=[int(x) for x in args.Flo.split(",")] if args.Flo else None, ctl=args.ctl, theta=args.theta, cx=args.cx, pf=args.pf, defer=args.defer, touch=args.touch, stf=(" " + args.stf) if args.stf else "", mdf=(" " + args.mdf) if args.mdf else "")
    open(args.o, "w").write(out)
    if args.v:
        print(N)
```

```python
import math
from gen import HEADER, NAME
from asmlib import Asm, vr, sr, f32bits, kd

BLK = 128 * 256
ML_OFF = 32 * BLK
MODE_OFF = 0x120000
LDS_QW = 131072
LDS_OA = LDS_QW + 8192
OA_STRIDE = 272
OA_SIZE = 16 * OA_STRIDE
LDS_ML = LDS_OA + 2 * OA_SIZE
LDS_MODE = LDS_ML + 128
LDS_TOTAL = LDS_MODE + 16
KEYLANE = [4 * [0, 2, 1, 3][k & 3] + 2 * (k >> 2) for k in range(8)]


DOC = """;
;
"""


class Sim:
    def __init__(self):
        self.order = {}
        self.n = 0
        self.N = {}

    def ins(self, s): pass
    def label(self, s): pass
    def raw(self, s): pass

    def issue(self, s, key=None):
        self.order[key] = self.n
        self.n += 1

    def wait(self, site, key):
        n = self.n - 1 - self.order[key]
        self.N[site] = min(self.N.get(site, 63), n)


class Emit:
    def __init__(self, a, N):
        self.a, self.N = a, N

    def ins(self, s): self.a(s)
    def label(self, s): self.a.label(s)
    def raw(self, s): self.a.raw(s)
    def issue(self, s, key=None): self.a(s)
    def wait(self, site, key): self.a(f"s_waitcnt vmcnt({self.N[site]})")


def gen_attn(F=4, kvflags="nt", wflags="nt", diag=False, wmap="p67501234", noq=False, nboost=2, pbar=False, F0=8,
             Flo=None, ctl=None, theta=32, mdf="", cx="las", pf="sc1", defer=False, touch=False, stf="", lay="A", rot=None, prio=0, kl=0, tog=False, FV=None, rf=0, skew=0, qmap=0, noqb=False, nost=0, kvx=0):
    a = Asm()
    C = (128.0 ** -0.5) * math.log2(math.e)
    kf = (" " + kvflags) if kvflags else ""
    wf = (" " + wflags) if wflags else ""
    mkP = lambda F: [F[i % len(F)] for i in range(8)]
    PH = mkP(F)
    PL = mkP(Flo) if Flo else None
    ENTRY = PH[7]
    PV = mkP(FV) if FV else PH
    for P in (PH, PL, PV):
        if P:
            assert all(1 <= x <= 7 for x in P) and P[7] == ENTRY
            assert all(i + P[i] <= i + 1 + P[(i + 1) % 8] for i in range(8))
    assert 1 <= nboost <= 7
    fb = ctl in ("fb", "fb2")
    fb2 = ctl == "fb2"
    fb3 = ctl == "fb3"

    def steady_issue(e, g0, i, fin, P):
        prev = max(fin - 1, (i - 1 + P[i - 1]) if i else -1)
        for j in range(prev + 1, i + P[i] + 1):
            ring_issue(e, g0 + j)

    sWG, sWAVE = 2, 3
    sP = 4
    sWS = 24
    sPF, sWQ, sX, sWO, sY = 28, 32, 36, 40, 44
    sNX = 48
    sVC = 52
    sKN = 54
    sVB = 58
    sT0, sT1, sT2, sT3 = 60, 61, 62, 63
    sC, sMASK, sSELLO, sSELHI, sCNT, sPO = 64, 65, 66, 67, 68, 69
    sH, sB, sQD, sPROB = 70, 71, 72, 73
    sSO, sM0N, sYO, sMO = 74, 75, 76, 77
    sCM = 78
    sMODE, sCC = 26, 27
    sDB = 80
    sDO = 53
    sLEAD = 57
    sMDN = 52
    sPS = 27
    NSGPR = 84
    sST = 84
    if diag:
        NSGPR = 100

    def stamp(e, i):
        if diag:
            e.ins(f"s_memrealtime {sr(sST+2*i,2)}")

    a.valloc(1)
    vLANE = a.valloc()
    vPO = a.valloc()
    vT0, vT1, vT2 = a.valloc(), a.valloc(), a.valloc()
    vMA = a.valloc(4, 4)
    vM, vL = vMA + 2, vMA + 3
    vWOE, vWOO = a.valloc(), a.valloc()
    vWQ0, vWQ1, vXO = a.valloc(), a.valloc(), a.valloc()
    vXP = a.valloc()
    vA = [a.valloc() for _ in range(4)]
    vQWA, vQRA, vOWA, vAFA, vMLA, vMLB, vMWA, vL4 = [a.valloc() for _ in range(8)]
    vAT, vMD, vMDA, vONE, vAT2 = [a.valloc() for _ in range(5)]
    vTCH, vYA, vL16 = a.valloc(), a.valloc(), a.valloc()
    vP = a.valloc(2, 2)
    vQ = a.valloc(4, 4)
    vACC = a.valloc(8, 4)
    vQA = a.valloc(8, 4)
    vS = a.valloc(16, 4)
    vSC = a.valloc(8, 4)
    vU = a.valloc(8, 4)
    vW = a.valloc(8, 4)
    vBF = a.valloc(64, 4)
    vRING = a.valloc(32, 4)
    vAF = a.valloc(16, 4)
    vML = a.valloc(16, 4)
    vD = a.valloc(16, 4)
    vSL = a.valloc(8, 4)
    slot = lambda g: vRING + 4 * (g % 8)

    def ring_issue(e, g, first=False, lds=False):
        per, bump, wrap = {"A": (4, 0x8000, 0x80000), "B": (1, 0x2000, 0x80000), "C": (4, 0x1000, 0x10000),
                           "D": (2, 0x4000, 0x80000)}[lay]
        if g % per == 0 and not first:
            e.ins(f"s_add_u32 s{sPO}, s{sPO}, {bump:#x}")
            if rot:
                e.ins(f"s_and_b32 s{sPO}, s{sPO}, {wrap - 1:#x}")
            if g % 8 == 0:
                e.ins(f"s_cmp_eq_u32 s{sPO}, " + (f"s{sPS}" if rot else f"{wrap:#x}"))
                e.ins(f"s_cselect_b32 s{sPF}, s{sNX}, s{sPF}")
                e.ins(f"s_cselect_b32 s{sPF+1}, s{sNX+1}, s{sPF+1}")
                e.ins(f"s_cselect_b32 s{sPF+2}, s{sNX+2}, s{sPF+2}")
                if not rot:
                    e.ins(f"s_cselect_b32 s{sPO}, 0, s{sPO}")
        if lds:
            if g % 4 == 0:
                e.ins(f"s_add_u32 m0, s{sM0N}, {8192 + g * 1024:#x}")
            e.issue(f"buffer_load_dwordx4 v{vPO}, {sr(sPF,4)}, s{sPO} offen offset:{(g%per)*1024}{kf} lds", ("r", g))
            return
        e.issue(f"buffer_load_dwordx4 {vr(slot(g),4)}, v{vPO}, {sr(sPF,4)}, s{sPO} offen offset:{(g%per)*1024}{kf}", ("r", g))

    def rowreduce8(e, acc, u0, u1):
        for x, y in ((0, 4), (2, 6), (1, 5), (3, 7)):
            e.ins(f"v_permlane32_swap_b32 v{acc+x}, v{acc+y}")
        for x, y in ((0, 4), (2, 6), (1, 5), (3, 7)):
            e.ins(f"v_add_f32 v{acc+x}, v{acc+x}, v{acc+y}")
        e.ins(f"v_permlane16_swap_b32 v{acc+0}, v{acc+2}")
        e.ins(f"v_permlane16_swap_b32 v{acc+1}, v{acc+3}")
        e.ins(f"v_add_f32 v{u0}, v{acc+0}, v{acc+2}")
        e.ins(f"v_add_f32 v{u1}, v{acc+1}, v{acc+3}")

    def wave_allreduce(e, op, x, t):
        e.ins(f"v_mov_b32 v{t}, v{x}")
        e.ins(f"v_permlane32_swap_b32 v{x}, v{t}")
        e.ins(f"{op} v{x}, v{x}, v{t}")
        e.ins(f"v_mov_b32 v{t}, v{x}")
        e.ins(f"v_permlane16_swap_b32 v{x}, v{t}")
        e.ins(f"{op} v{x}, v{x}, v{t}")

    def q_final(e):
        for w in range(1, 8):
            e.ins(f"v_add_f32 v{vS}, v{vS}, v{vS+2*w}")
            e.ins(f"v_add_f32 v{vS+1}, v{vS+1}, v{vS+2*w+1}")
        e.ins(f"v_cvt_pk_bf16_f32 v{vQ}, v{vS}, v{vS+1}")
        e.ins(f"v_mov_b32 v{vQ+1}, v{vQ}")
        e.ins(f"v_permlane16_swap_b32 v{vQ}, v{vQ+1}")
        e.ins(f"v_mov_b32 v{vQ+2}, v{vQ}")
        e.ins(f"v_mov_b32 v{vQ+3}, v{vQ+1}")
        e.ins(f"v_permlane32_swap_b32 v{vQ}, v{vQ+2}")
        e.ins(f"v_permlane32_swap_b32 v{vQ+1}, v{vQ+3}")

    def qpair(e, w0, w1, xp, acc):
        for k in range(4):
            e.ins(f"v_perm_b32 v{vU+2*k}, v{w1+k}, v{w0+k}, s{sSELLO}")
            e.ins(f"v_perm_b32 v{vU+2*k+1}, v{w1+k}, v{w0+k}, s{sSELHI}")
        for k in range(8):
            e.ins(f"v_dot2c_f32_bf16 v{acc+k}, v{vU+k}, v{xp}")

    def wqn_issue(e, key):
        e.issue(f"buffer_load_dwordx4 {vr(vW,4)}, v{vWQ0}, {sr(sWQ,4)}, 0 offen{wf}", None)
        e.issue(f"buffer_load_dwordx4 {vr(vW+4,4)}, v{vWQ1}, {sr(sWQ,4)}, 0 offen{wf}", None)
        e.issue(f"buffer_load_dword v{vXP}, v{vXO}, {sr(sX,4)}, 0 offen", key)
        e.ins(f"v_add_u32 v{vWQ0}, {0x80000 if qmap else 0x4000:#x}, v{vWQ0}")
        e.ins(f"v_add_u32 v{vWQ1}, {0x80000 if qmap else 0x4000:#x}, v{vWQ1}")
        e.ins(f"v_add_u32 v{vXO}, {128 if qmap else 4}, v{vXO}")

    bits = [int(c) for c in wmap[1:]]
    assert sorted(bits) == list(range(8))

    def field(e, dst, bl):
        i = 0
        first = True
        while i < len(bl):
            j = i
            while j + 1 < len(bl) and bl[j + 1] == bl[j] + 1:
                j += 1
            t = dst if first else sT3
            e.ins(f"s_bfe_u32 s{t}, s{sWG}, {((j - i + 1) << 16) | bl[i]:#x}")
            if i:
                e.ins(f"s_lshl_b32 s{t}, s{t}, {i}")
            if not first:
                e.ins(f"s_or_b32 s{dst}, s{dst}, s{sT3}")
            first = False
            i = j + 1

    def b_prologue(e):
        e.label(NAME + "_kernel")
        e.ins(f"s_cmp_ge_u32 s{sWG}, 256")
        e.ins("s_cbranch_scc1 L_attn_end")
        stamp(e, 0)
        e.ins(f"s_load_dwordx16 {sr(sP,16)}, s[0:1], 0")
        e.ins(f"s_load_dwordx4 {sr(sP+16,4)}, s[0:1], 64")
        e.ins(f"s_load_dwordx2 {sr(sWS,2)}, s[0:1], 96")
        if fb or fb3:
            e.ins(f"s_load_dwordx2 {sr(sDB,2)}, s[0:1], 88")
        field(e, sQD, bits[0:2])
        field(e, sB, bits[2:3])
        field(e, sH, bits[3:8])
        if skew:
            e.ins(f"s_lshr_b32 s{sT3}, s{sH}, 3")
            e.ins(f"s_mul_i32 s{sT3}, s{sT3}, {skew}")
            e.ins(f"s_add_u32 s{sT3}, s{sT3}, s{sH}")
            e.ins(f"s_and_b32 s{sT3}, s{sT3}, 7")
            e.ins(f"s_and_b32 s{sH}, s{sH}, 24")
            e.ins(f"s_or_b32 s{sH}, s{sH}, s{sT3}")
        e.ins(f"v_lshrrev_b32 v{vT0}, 6, v0")
        e.ins(f"v_and_b32 v{vLANE}, 63, v0")
        e.ins(f"v_readfirstlane_b32 s{sWAVE}, v{vT0}")
        e.ins(f"v_lshrrev_b32 v{vT0}, 4, v0")
        e.ins(f"v_and_b32 v{vT1}, 15, v0")
        e.ins(f"v_lshlrev_b32 v{vT1}, 4, v{vT1}")
        e.ins(f"v_lshl_add_u32 v{vWQ0}, v{vT0}, 17, v{vT1}")
        e.ins(f"v_lshlrev_b32 v{vXO}, 5, v{vT0}")
        e.ins(f"v_lshlrev_b32 v{vPO}, 4, v{vLANE}")
        e.ins(f"s_lshl_b32 s{sT0}, s{sWAVE}, {dict(A=12, B=10, C=16, D=11)[lay]}")
        e.ins(f"v_add_u32 v{vPO}, s{sT0}, v{vPO}")
        e.ins(f"s_lshl_b32 s{sT0}, s{sB}, 26")
        e.ins(f"s_lshl_b32 s{sT1}, s{sH}, 21")
        e.ins(f"s_lshl_b32 s{sT2}, s{sQD}, 19")
        e.ins(f"s_add_u32 s{sT0}, s{sT0}, s{sT1}")
        e.ins(f"s_add_u32 s{sT0}, s{sT0}, s{sT2}")
        e.ins(f"s_lshl_b32 s{sT1}, s{sH}, 8")
        e.ins(f"s_lshl_b32 s{sT2}, s{sB}, 10")
        e.ins(f"s_lshl_b32 s{sT3}, s{sH}, 17")
        for r, nrec in ((sPF, 1 << 19), (sWQ, 0 if noq else 511 * 8192 + 256), (sWO, 0 if noq else 131072),
                        (sX, 1024), (sY, MODE_OFF + 2048)):
            e.ins(f"s_mov_b32 s{r+2}, {nrec:#x}")
            e.ins(f"s_mov_b32 s{r+3}, 0x00020000")
        e.ins(f"s_mov_b32 s{sSO}, 0")
        e.ins(f"s_lshl_b32 s{sM0N}, s{sWAVE}, 14")
        if rot:
            sh, mul = rot
            e.ins(f"s_lshr_b32 s{sPS}, s{sWG}, {sh}")
            e.ins(f"s_mul_i32 s{sPS}, s{sPS}, {mul * 0x8000:#x}")
            e.ins(f"s_and_b32 s{sPS}, s{sPS}, 0x7ffff")
            e.ins(f"s_mov_b32 s{sPO}, s{sPS}")
        else:
            e.ins(f"s_mov_b32 s{sPO}, 0")
        e.ins("s_waitcnt lgkmcnt(0)")
        stamp(e, 1)
        e.ins(f"s_add_u32 s{sPF}, s{sP+2}, s{sT0}")
        e.ins(f"s_addc_u32 s{sPF+1}, s{sP+3}, 0")
        if kl == 4:
            for g in range(8):
                ring_issue(e, g, first=(g == 0), lds=True)
        for g in range(rf):
            ring_issue(e, g, first=(g == 0))
        e.ins(f"s_add_u32 s{sX}, s{sP}, s{sT2}")
        e.ins(f"s_addc_u32 s{sX+1}, s{sP+1}, 0")
        e.ins(f"s_add_u32 s{sWQ}, s{sP+6}, s{sT1}")
        e.ins(f"s_addc_u32 s{sWQ+1}, s{sP+7}, 0")
        e.issue(f"buffer_load_dwordx4 {vr(vW,4)}, v{vXO}, {sr(sX,4)}, 0 offen")
        e.issue(f"buffer_load_dwordx4 {vr(vW+4,4)}, v{vXO}, {sr(sX,4)}, 0 offen offset:16")
        for j in range(16):
            e.issue(f"buffer_load_dwordx4 {vr(vBF+4*j,4)}, v{vWQ0}, {sr(sWQ,4)}, s{sSO} offen{wf}", ("wq", j))
            if j < 15:
                e.ins(f"s_add_u32 s{sSO}, s{sSO}, 0x2000")
            if kl == 1 and j % 2 == 1:
                ring_issue(e, j // 2, first=(j == 1), lds=True)
            if kl == 2 and j >= 8:
                ring_issue(e, j - 8, first=(j == 8), lds=True)
        if kl == 3:
            for g in range(8):
                ring_issue(e, g, first=(g == 0), lds=True)
        if pbar:
            e.ins("s_barrier")
        for g in range(8 if kl else rf, 16 if kl else 8):
            ring_issue(e, g, first=(g == 0))
        e.ins(f"s_add_u32 s{sNX}, s{sP+4}, s{sT0}")
        e.ins(f"s_addc_u32 s{sNX+1}, s{sP+5}, 0")
        e.ins(f"s_mov_b32 s{sNX+2}, 0x80000")
        e.ins(f"s_mov_b32 s{sNX+3}, 0x00020000")
        e.ins(f"s_add_u32 s{sKN}, s{sP+12}, s{sT0}")
        e.ins(f"s_addc_u32 s{sKN+1}, s{sP+13}, 0")
        e.ins(f"s_mov_b32 s{sKN+2}, 0x80000")
        e.ins(f"s_add_u32 s{sVB}, s{sP+14}, s{sT0}")
        e.ins(f"s_addc_u32 s{sVB+1}, s{sP+15}, 0")
        e.ins(f"s_add_u32 s{sWO}, s{sP+8}, s{sT3}")
        e.ins(f"s_addc_u32 s{sWO+1}, s{sP+9}, 0")
        e.ins(f"s_add_u32 s{sP+18}, s{sP+18}, s{sT3}")
        e.ins(f"s_addc_u32 s{sP+19}, s{sP+19}, 0")
        e.ins(f"s_add_u32 s{sX}, s{sP+10}, s{sT2}")
        e.ins(f"s_addc_u32 s{sX+1}, s{sP+11}, 0")
        e.ins(f"s_add_u32 s{sWQ}, s{sP+16}, s{sT1}")
        e.ins(f"s_addc_u32 s{sWQ+1}, s{sP+17}, 0")
        e.ins(f"s_mov_b32 s{sY}, s{sWS}")
        e.ins(f"s_mov_b32 s{sY+1}, s{sWS+1}")
        e.ins(f"s_mov_b32 s{sC}, {f32bits(C):#x}")
        e.ins(f"s_mov_b32 s{sMASK}, 0xffff0000")
        e.ins(f"s_mov_b32 s{sSELLO}, 0x05040100")
        e.ins(f"s_mov_b32 s{sSELHI}, 0x07060302")
        e.ins(f"s_mov_b32 s{sCM}, 0xcccccccc")
        e.ins(f"s_mov_b32 s{sCM+1}, 0xcccccccc")
        e.ins(f"s_mov_b32 s{sPROB}, 0")
        if not rot:
            e.ins(f"s_mov_b32 s{sCC}, 0")
        if fb:
            e.ins(f"s_movk_i32 s{sDB+2}, 0x100")
            e.ins(f"s_mov_b32 s{sDB+3}, 0x00020000")
            e.ins(f"s_bfe_u32 s{sDO}, s{sWG}, 0x20003")
            e.ins(f"s_lshl_b32 s{sDO}, s{sDO}, 6")
            e.ins(f"v_mov_b32 v{vONE}, 0x01010101")
            e.ins(f"s_mov_b32 s{sMODE}, 0")
            e.ins(f"v_mov_b32 v{vMDA}, {LDS_MODE:#x}")
            e.ins(f"v_mov_b32 v{vMD}, 0")
            e.ins(f"ds_write_b32 v{vMDA}, v{vMD}")
        elif fb3:
            e.ins(f"s_movk_i32 s{sDB+2}, 0x100")
            e.ins(f"s_mov_b32 s{sDB+3}, 0x00020000")
            e.ins(f"s_and_b32 s{sDO}, s{sWG}, 7")
            e.ins(f"v_cmp_eq_u32 vcc, s{sDO}, v{vLANE}")
            e.ins(f"s_lshl_b32 s{sDO}, s{sDO}, 8")
            e.ins(f"s_add_u32 s{sDO}, s{sDO}, {MODE_OFF:#x}")
            e.ins(f"s_mov_b32 s{sMODE}, 0")
            e.ins(f"v_cndmask_b32 v{vONE}, 0, 1, vcc")
            e.ins(f"s_lshr_b32 s{sLEAD}, s{sWG}, 3")
            e.ins(f"v_mov_b32 v{vMDA}, {LDS_MODE:#x}")
            e.ins(f"v_mov_b32 v{vAT}, 0")
            e.ins(f"ds_write_b32 v{vMDA}, v{vAT}")
            e.ins(f"s_or_b32 s{sT0}, s{sLEAD}, s{sWAVE}")
            e.ins("s_cbranch_scc1 L_noinit")
            e.ins("s_mov_b64 exec, 1")
            e.ins(f"buffer_store_dword v{vAT}, off, {sr(sY,4)}, s{sDO}")
            e.ins("s_mov_b64 exec, -1")
            e.label("L_noinit")
        elif tog:
            e.ins(f"s_lshr_b32 s{sMODE}, s{sWAVE}, 2")
        elif ctl and ctl.startswith("hb"):
            tab = sum(int(c, 16) << (4 * i) for i, c in enumerate(ctl[2:]))
            e.ins(f"s_and_b32 s{sT0}, s{sH}, 7")
            e.ins(f"s_lshl_b32 s{sT0}, s{sT0}, 2")
            e.ins(f"s_lshr_b32 s{sMODE}, {tab:#x}, s{sT0}")
            e.ins(f"s_and_b32 s{sMODE}, s{sMODE}, 15")
        elif ctl == "h1":
            e.ins(f"s_and_b32 s{sMODE}, s{sH}, 3")
            e.ins(f"s_xor_b32 s{sMODE}, s{sMODE}, 1")
        elif ctl == "h5":
            e.ins(f"s_and_b32 s{sMODE}, s{sH}, 7")
            e.ins(f"s_xor_b32 s{sMODE}, s{sMODE}, 5")
        elif ctl == "even":
            e.ins(f"s_getreg_b32 s{sMODE}, hwreg(HW_REG_XCC_ID, 0, 1)")
            e.ins(f"s_xor_b32 s{sMODE}, s{sMODE}, 1")
        elif ctl:
            e.ins(f"s_and_b32 s{sMODE}, s{sWG}, {int(ctl)}")
        e.ins(f"s_mov_b32 s{sSO}, 0")
        if qmap:
            e.ins(f"v_lshrrev_b32 v{vT0}, 4, v0")
            e.ins(f"v_and_b32 v{vT1}, 15, v0")
            e.ins(f"v_lshlrev_b32 v{vT1}, 4, v{vT1}")
            e.ins(f"v_lshl_add_u32 v{vWQ0}, v{vT0}, 14, v{vT1}")
            e.ins(f"v_lshlrev_b32 v{vXO}, 2, v{vT0}")
        if noqb:
            e.ins(f"s_mov_b32 s{sWQ+2}, 0")
        e.ins(f"v_add_u32 v{vWQ1}, 0x2000, v{vWQ0}")
        e.ins(f"v_lshrrev_b32 v{vT0}, 3, v{vLANE}")
        e.ins(f"v_and_b32 v{vT1}, 7, v{vLANE}")
        e.ins(f"v_and_b32 v{vT2}, 2, v{vT0}")
        e.ins(f"v_lshlrev_b32 v{vT0}, 10, v{vT0}")
        e.ins(f"v_xor_b32 v{vT1}, v{vT1}, v{vT2}")
        e.ins(f"v_lshl_add_u32 v{vT0}, v{vT1}, 4, v{vT0}")
        e.ins(f"s_lshl_b32 s{sT0}, s{sWAVE}, 7")
        e.ins(f"v_add_u32 v{vWOE}, s{sT0}, v{vT0}")
        e.ins(f"v_xor_b32 v{vWOO}, 64, v{vWOE}")
        e.ins(f"v_lshrrev_b32 v{vT0}, 4, v{vLANE}")
        e.ins(f"v_bfe_u32 v{vT1}, v{vLANE}, 2, 2")
        e.ins(f"v_lshl_add_u32 v{vT1}, v{vT0}, 3, v{vT1}")
        e.ins(f"v_lshlrev_b32 v{vT1}, 7, v{vT1}")
        e.ins(f"v_bfe_u32 v{vT2}, v{vLANE}, 3, 2")
        e.ins(f"v_lshl_add_u32 v{vT1}, v{vT2}, 5, v{vT1}")
        e.ins(f"v_and_b32 v{vT2}, 3, v{vLANE}")
        e.ins(f"v_lshl_add_u32 v{vT1}, v{vT2}, 3, v{vT1}")
        e.ins(f"v_add_u32 v{vA[0]}, s{sM0N}, v{vT1}")
        for t in range(1, 4):
            e.ins(f"v_xor_b32 v{vA[t]}, {t<<5}, v{vA[0]}")
        e.ins(f"v_and_b32 v{vT1}, 15, v{vLANE}")
        e.ins(f"v_lshlrev_b32 v{vT2}, 5, v{vT1}")
        e.ins(f"v_lshl_add_u32 v{vT2}, v{vT0}, 3, v{vT2}")
        e.ins(f"v_add_u32 v{vQRA}, {LDS_QW:#x}, v{vT2}")
        e.ins(f"s_lshl_b32 s{sT0}, s{sWAVE}, 9")
        e.ins(f"v_add_u32 v{vQWA}, s{sT0}, v{vQRA}")
        e.ins(f"v_lshlrev_b32 v{vT2}, 4, v{vT1}")
        e.ins(f"v_lshl_add_u32 v{vT2}, v{vT0}, 2, v{vT2}")
        e.ins(f"s_mul_i32 s{sT0}, s{sWAVE}, {OA_STRIDE}")
        e.ins(f"s_add_u32 s{sT0}, s{sT0}, {LDS_OA:#x}")
        e.ins(f"v_add_u32 v{vOWA}, s{sT0}, v{vT2}")
        e.ins(f"v_mul_u32_u24 v{vT2}, {OA_STRIDE}, v{vT1}")
        e.ins(f"v_lshl_add_u32 v{vT2}, v{vT0}, 4, v{vT2}")
        e.ins(f"v_add_u32 v{vAFA}, {LDS_OA:#x}, v{vT2}")
        e.ins(f"s_lshl_b32 s{sT0}, s{sWAVE}, 3")
        e.ins(f"s_add_u32 s{sT0}, s{sT0}, {LDS_ML:#x}")
        e.ins(f"v_mov_b32 v{vMWA}, s{sT0}")
        e.ins(f"v_and_b32 v{vT2}, 1, v{vT0}")
        e.ins(f"v_lshlrev_b32 v{vT2}, 5, v{vT2}")
        e.ins(f"v_add_u32 v{vMLA}, {LDS_ML:#x}, v{vT2}")
        e.ins(f"v_xor_b32 v{vMLB}, 32, v{vMLA}")
        e.ins(f"v_lshlrev_b32 v{vL4}, 2, v{vLANE}")
        e.ins(f"v_lshlrev_b32 v{vL16}, 4, v{vLANE}")
        e.ins(f"s_lshl_b32 s{sT0}, s{sB}, 3")
        e.ins(f"s_add_u32 s{sT0}, s{sT0}, s{sWAVE}")
        e.ins(f"s_mul_i32 s{sT0}, s{sT0}, {BLK}")
        e.ins(f"s_lshl_b32 s{sT1}, s{sH}, 2")
        e.ins(f"s_add_u32 s{sT1}, s{sT1}, s{sQD}")
        e.ins(f"s_lshl_b32 s{sMO}, s{sB}, 7")
        e.ins(f"s_add_u32 s{sMO}, s{sMO}, s{sT1}")
        e.ins(f"s_lshl_b32 s{sMO}, s{sMO}, 7")
        e.ins(f"s_add_u32 s{sMO}, s{sMO}, {ML_OFF:#x}")
        e.ins(f"s_lshl_b32 s{sT2}, s{sT1}, 8")
        e.ins(f"s_add_u32 s{sYO}, s{sT2}, s{sT0}")
        for i in range(8):
            e.ins(f"v_mov_b32 v{vQA+i}, 0")
        for i in range(8):
            e.wait(("pro", i), ("wq", 2 * i + 1))
            if i == 7:
                stamp(e, 2)
            qpair(e, vBF + 8 * i, vBF + 8 * i + 4, vW + i, vQA)
        rowreduce8(e, vQA, vU, vU + 1)
        e.ins(f"ds_write_b64 v{vQWA}, {vr(vU,2)}")
        e.ins("s_waitcnt lgkmcnt(0)")
        e.ins("s_barrier")
        for w in range(8):
            e.ins(f"ds_read_b64 {vr(vS+2*w,2)}, v{vQRA} offset:{w*512}")
        e.ins(f"v_add_u32 v{vQWA}, 0x1000, v{vQWA}")
        e.ins(f"v_add_u32 v{vQRA}, 0x1000, v{vQRA}")
        e.ins("s_waitcnt lgkmcnt(0)")
        q_final(e)
        if prio:
            e.ins(f"s_cmp_lt_u32 s{sWAVE}, 4")
            e.ins("s_cbranch_scc1 L_noprio")
            e.ins(f"s_setprio {prio}")
            e.label("L_noprio")
        stamp(e, 3)

    def ctl_hook(e, name, i, b):
        if fb3 and name not in ("k0", "v8"):
            if i == 0:
                e.ins(f"s_and_b32 s{sT0}, s{sCC}, 7")
                e.ins(f"s_cmp_lg_u32 s{sT0}, s{sWAVE}")
                e.ins(f"s_cbranch_scc1 L_c0{name}")
                if "l" in cx:
                    e.ins(f"buffer_load_dword v{vAT2}, off, {sr(sY,4)}, s{sDO}{mdf}")
                else:
                    e.ins(f"v_mov_b32 v{vAT2}, 0")
                e.ins(f"s_cmp_lg_u32 s{sLEAD}, 0")
                e.ins(f"s_cbranch_scc1 L_c0{name}")
                e.ins(f"v_mov_b32 v{vAT}, -1")
                e.ins("s_mov_b64 exec, 0xff")
                e.ins(f"v_mov_b32 v{vAT}, v{vONE}")
                if "a" in cx:
                    e.ins(f"buffer_atomic_add v{vAT}, v{vL4}, {sr(sDB,4)}, 0 offen sc0 sc1")
                if "p" in cx:
                    e.ins(f"buffer_load_dword v{vAT}, v{vL4}, {sr(sDB,4)}, 0 offen {pf}")
                    e.ins(f"s_add_u32 s{sT0}, s{sCC}, 1")
                    e.ins(f"s_lshl_b32 s{sT1}, s{sWG}, 2")
                    e.ins(f"v_mov_b32 v{vMD}, s{sT0}")
                    e.ins("s_mov_b64 exec, 1")
                    e.ins(f"buffer_store_dword v{vMD}, off, {sr(sDB,4)}, s{sT1} {pf}")
                e.ins("s_mov_b64 exec, -1")
                e.label(f"L_c0{name}")
            if i == 5:
                e.ins(f"s_and_b32 s{sT0}, s{sCC}, 7")
                e.ins(f"s_cmp_lg_u32 s{sT0}, s{sWAVE}")
                e.ins(f"s_cbranch_scc1 L_c7{name}")
                e.ins(f"s_cmp_lg_u32 s{sLEAD}, 0")
                e.ins(f"s_cbranch_scc1 L_c6{name}")
                e.ins(f"s_add_u32 s{sT0}, s{sCC}, {1 - theta}")
                e.ins(f"s_max_i32 s{sT0}, s{sT0}, 0")
                for st in (8, 4, 2, 1):
                    e.ins(f"v_min_u32_dpp v{vAT}, v{vAT}, v{vAT} row_ror:{st} row_mask:0xf bank_mask:0xf")
                e.ins(f"v_cmp_gt_u32 vcc, s{sT0}, v{vAT}")
                e.ins(f"v_cndmask_b32 v{vAT2}, 0, 1, vcc")
                e.ins("s_mov_b64 exec, 1")
                if "s" in cx:
                    e.ins(f"buffer_store_dword v{vAT2}, off, {sr(sY,4)}, s{sDO}")
                e.label(f"L_c6{name}")
                e.ins("s_mov_b64 exec, 1")
                e.ins(f"ds_write_b32 v{vMDA}, v{vAT2}")
                e.ins("s_mov_b64 exec, -1")
                e.label(f"L_c7{name}")
                e.ins(f"s_add_u32 s{sCC}, s{sCC}, 1")
            if i == 7:
                e.ins(f"ds_read_b32 v{vMD}, v{vMDA}")
            return
        if not fb or name in ("k0", "v8"):
            return
        if i == 0:
            e.ins(f"s_and_b32 s{sT0}, s{sCC}, 7")
            e.ins(f"s_cmp_lg_u32 s{sT0}, s{sWAVE}")
            e.ins(f"s_cbranch_scc1 L_c0{name}")
            if fb2:
                e.ins(f"buffer_load_dword v{vAT}, v{vL4}, {sr(sDB,4)}, 0 offen sc1")
                e.ins(f"v_mov_b32 v{vAT2}, s{sCC}")
                e.ins("s_mov_b64 exec, 1")
                e.ins(f"buffer_store_byte v{vAT2}, v{vL4}, {sr(sDB,4)}, s{sWG} offen sc1")
            else:
                e.ins("s_mov_b64 exec, 1")
                e.ins(f"v_mov_b32 v{vAT}, 1")
                e.ins(f"buffer_atomic_add v{vAT}, v{vL4}, {sr(sDB,4)}, s{sDO} offen sc0 sc1")
            e.ins("s_mov_b64 exec, -1")
            e.label(f"L_c0{name}")
        if i == 6:
            e.ins(f"ds_read_b32 v{vMD}, v{vMDA}")
        if i == 7:
            e.ins(f"s_and_b32 s{sT0}, s{sCC}, 7")
            e.ins(f"s_cmp_lg_u32 s{sT0}, s{sWAVE}")
            e.ins(f"s_cbranch_scc1 L_c7{name}")
            if fb2:
                e.ins(f"v_dot4_u32_u8 v{vAT}, v{vAT}, v{vONE}, 0")
                e.ins(f"s_lshl_b32 s{sT0}, s{sCC}, 8")
                e.ins(f"s_sub_u32 s{sT0}, s{sT0}, {theta}")
                e.ins(f"s_max_i32 s{sT0}, s{sT0}, 0")
                for st in (8, 4, 2, 1):
                    e.ins(f"v_add_u32_dpp v{vAT}, v{vAT}, v{vAT} row_ror:{st} row_mask:0xf bank_mask:0xf")
                wave_allreduce(e, "v_add_u32", vAT, vAT2)
            else:
                e.ins(f"s_lshl_b32 s{sT0}, s{sCC}, 6")
                e.ins(f"s_add_u32 s{sT0}, s{sT0}, {theta}")
            e.ins("s_mov_b64 exec, 1")
            e.ins(f"v_cmp_gt_u32 vcc, s{sT0}, v{vAT}")
            e.ins(f"v_cndmask_b32 v{vAT}, 0, 1, vcc")
            e.ins(f"ds_write_b32 v{vMDA}, v{vAT}")
            e.ins("s_mov_b64 exec, -1")
            e.label(f"L_c7{name}")
            e.ins(f"s_add_u32 s{sCC}, s{sCC}, 1")

    def ctl_fetch(e, name, b):
        if fb3 and name not in ("k0", "v8"):
            e.ins("s_waitcnt lgkmcnt(0)")
            e.ins(f"v_readfirstlane_b32 s{sMODE}, v{vMD}")
        if fb and name not in ("k0", "v8"):
            e.ins("s_waitcnt lgkmcnt(0)")
            e.ins(f"v_readfirstlane_b32 s{sMODE}, v{vMD}")

    def toggle(e, name):
        if tog:
            e.ins(f"s_xor_b32 s{sMODE}, s{sMODE}, 1")
            e.ins(f"s_cbranch_scc1 L_tg{name}")
            e.ins("s_setprio 0")
            e.ins(f"s_branch L_tgd{name}")
            e.label(f"L_tg{name}")
            e.ins("s_setprio 1")
            e.label(f"L_tgd{name}")

    def k_body(e, name, b, fin, P):
        g0 = 8 * b
        if name == "kl":
            e.wait((name, 0), ("r", 7))
            e.ins(f"v_add_u32 v{vT0}, s{sM0N}, v{vL16}")
            for i in range(8):
                e.ins(f"ds_read_b128 {vr(vBF+4*i,4)}, v{vT0} offset:{8192+1024*i}")
        toggle(e, name)
        for i in range(8):
            if name == "kl":
                e.ins(f"s_waitcnt lgkmcnt({7-i})")
            else:
                e.wait((name, i), ("r", g0 + i))
                steady_issue(e, g0, i, fin, P)
                ctl_hook(e, name, i, b)
            R0 = slot(i) if name != "kl" else vBF + 4 * i
            e.ins(f"v_dot2_f32_bf16 v{vS+i}, v{R0}, v{vQ}, 0")
            for kk in range(1, 4):
                e.ins(f"v_dot2_f32_bf16 v{vS+i}, v{R0+kk}, v{vQ+kk}, v{vS+i}")
            if touch and name == "k0" and i == 3:
                e.issue(f"buffer_load_dword v{vTCH}, off, {sr(sNX,4)}, 0{kf}")
            if i in (1, 5):
                e.ins(f"s_mov_b32 m0, s{sM0N}")
                e.ins(f"s_add_u32 s{sM0N}, s{sM0N}, 0x400")
                e.issue(f"buffer_load_dwordx4 v{vWOE if i == 1 else vWOO}, {sr(sWO,4)}, s{sSO} offen{wf} lds", ("dma", b, i))
                e.ins(f"s_add_u32 s{sSO}, s{sSO}, 0x2000")
            if i in (2, 4, 6):
                e.ins(f"v_add_f32_dpp v{vS+i-2}, v{vS+i-2}, v{vS+i-2} row_ror:8 row_mask:0xf bank_mask:0x3")
                e.ins(f"v_add_f32_dpp v{vS+i-2}, v{vS+i-1}, v{vS+i-1} row_ror:8 row_mask:0xf bank_mask:0xc")
            if i == 5:
                e.ins(f"v_add_f32_dpp v{vS}, v{vS}, v{vS} row_shl:4 row_mask:0xf bank_mask:0x5")
                e.ins(f"v_add_f32_dpp v{vS}, v{vS+2}, v{vS+2} row_shr:4 row_mask:0xf bank_mask:0xa")
            if i == 6:
                e.ins(f"v_add_f32_dpp v{vS}, v{vS}, v{vS} quad_perm:[2,3,0,1] row_mask:0xf bank_mask:0xf")
        for r in range(7, 4, -1):
            e.ins(f"v_mov_b32 v{vSC+r}, v{vSC+r-1}")
        e.ins(f"v_add_f32_dpp v{vS+6}, v{vS+6}, v{vS+6} row_ror:8 row_mask:0xf bank_mask:0x3")
        e.ins(f"v_add_f32_dpp v{vS+6}, v{vS+7}, v{vS+7} row_ror:8 row_mask:0xf bank_mask:0xc")
        e.ins(f"v_add_f32_dpp v{vS+4}, v{vS+4}, v{vS+4} row_shl:4 row_mask:0xf bank_mask:0x5")
        e.ins(f"v_mov_b32 v{vSC+4}, v{vSC+3}")
        e.ins(f"v_add_f32_dpp v{vS+4}, v{vS+6}, v{vS+6} row_shr:4 row_mask:0xf bank_mask:0xa")
        e.ins(f"v_mov_b32 v{vSC+3}, v{vSC+2}")
        e.ins(f"v_mov_b32 v{vSC+2}, v{vSC+1}")
        e.ins(f"v_add_f32_dpp v{vS+4}, v{vS+4}, v{vS+4} quad_perm:[2,3,0,1] row_mask:0xf bank_mask:0xf")
        e.ins(f"v_mov_b32 v{vSC+1}, v{vSC}")
        e.ins(f"v_cndmask_b32 v{vS}, v{vS}, v{vS+4}, {sr(sCM,2)}")
        ctl_fetch(e, name, b)
        e.ins(f"s_add_u32 s{sCNT}, s{sCNT}, 1")
        e.ins(f"s_cmp_lt_u32 s{sCNT}, 8")
        e.ins(f"v_add_f32_dpp v{vSC}, v{vS}, v{vS} quad_perm:[1,0,3,2] row_mask:0xf bank_mask:0xf")

    def pick_lo(e, lab):
        if ctl and ctl.startswith("hb"):
            e.ins(f"s_cmp_eq_u32 s{sMODE}, 0")
            e.ins(f"s_cbranch_scc1 {lab}")
            e.ins(f"s_sub_u32 s{sMODE}, s{sMODE}, 1")
        else:
            e.ins(f"s_cmp_lg_u32 s{sMODE}, 0")
            e.ins(f"s_cbranch_scc1 {lab}")

    def b_kl(e):
        e.ins(f"s_mov_b32 s{sCNT}, 0")
        k_body(e, "kl", 0, 8, PH)

    def b_k0(e, b):
        if not kl:
            e.ins(f"s_mov_b32 s{sCNT}, 0")
        e.label("L_prob")
        k_body(e, "k0", b, 8, PH)

    def b_ks(e, b, lo=False):
        if not PL:
            e.label("L_ks")
            k_body(e, "ks", b, ENTRY, PH)
            e.ins("s_cbranch_scc1 L_ks")
        elif not lo:
            e.label("L_ks")
            pick_lo(e, "L_ksl")
            k_body(e, "ks", b, ENTRY, PH)
            e.ins("s_cbranch_scc1 L_ks")
            e.ins("s_branch L_kv")
        else:
            e.label("L_ksl")
            k_body(e, "ksl", b, ENTRY, PL)
            e.ins("s_cbranch_scc1 L_ks")
            e.label("L_kv")

    def b_kv(e, b):
        stamp(e, 4)
        for g in range(8 * b + ENTRY, 8 * b + ENTRY + kvx):
            ring_issue(e, g)
        e.ins(f"v_max3_f32 v{vM}, v{vSC}, v{vSC+1}, v{vSC+2}")
        e.ins(f"v_max3_f32 v{vT0}, v{vSC+3}, v{vSC+4}, v{vSC+5}")
        e.ins(f"v_max3_f32 v{vM}, v{vSC+6}, v{vSC+7}, v{vM}")
        e.ins(f"v_max_f32 v{vM}, v{vM}, v{vT0}")
        wqn_issue(e, ("wqn", b))
        for st in (8, 4, 2):
            e.ins(f"v_max_f32_dpp v{vM}, v{vM}, v{vM} row_ror:{st} row_mask:0xf bank_mask:0xf")
        wave_allreduce(e, "v_max_f32", vM, vT0)
        e.ins(f"v_mul_f32 v{vM}, s{sC}, v{vM}")
        for r in range(8):
            e.ins(f"v_fma_f32 v{vSC+r}, v{vSC+r}, s{sC}, -v{vM}")
        for r in range(8):
            e.ins(f"v_exp_f32 v{vSC+r}, v{vSC+r}")
        for i in range(8):
            e.ins(f"v_mov_b32 v{vACC+i}, 0")
        for i in range(8):
            e.ins(f"v_mov_b32 v{vQA+i}, 0")
        e.ins(f"v_add_f32 v{vL}, v{vSC}, v{vSC+1}")
        for r in range(2, 8):
            e.ins(f"v_add_f32 v{vL}, v{vL}, v{vSC+r}")
        for st in (8, 4, 2):
            e.ins(f"v_add_f32_dpp v{vL}, v{vL}, v{vL} row_ror:{st} row_mask:0xf bank_mask:0xf")
        wave_allreduce(e, "v_add_f32", vL, vT0)
        e.ins("s_mov_b64 exec, 1")
        e.ins(f"ds_write_b64 v{vMWA}, {vr(vM,2)}")
        e.ins("s_mov_b64 exec, -1")
        e.wait(("kv", 0), ("dma", b - 1, 5))
        for s in range(4):
            for t in range(4):
                for h in range(2):
                    e.ins(f"ds_read_b64_tr_b16 {vr(vBF+16*s+4*t+2*h,2)}, v{vA[t]} offset:{4096*s+512*h}")
        e.ins(f"s_mov_b32 s{sNX}, s{sKN}")
        e.ins(f"s_mov_b32 s{sNX+1}, s{sKN+1}")
        e.ins(f"s_mov_b32 s{sNX+2}, s{sKN+2}")
        if touch:
            e.issue(f"buffer_load_dword v{vTCH}, off, {sr(sNX,4)}, 0{kf}")
        e.ins(f"s_mov_b32 s{sCNT}, 0")

    def v_body(e, name, b, late, P=None, fin=None):
        g0 = 8 * b
        toggle(e, name)
        for i in range(8):
            e.wait((name, i), ("r", g0 + i))
            if not late:
                steady_issue(e, g0, i, fin or ENTRY, P)
            ctl_hook(e, name, i, b)
            R0 = slot(i)
            e.ins(f"v_mov_b32_dpp v{vP}, v{vSC+7} row_newbcast:{KEYLANE[i]} row_mask:0xf bank_mask:0xf")
            for k in range(4):
                e.ins(f"v_lshlrev_b32 v{vU+2*k}, 16, v{R0+k}")
                e.ins(f"v_and_b32 v{vU+2*k+1}, s{sMASK}, v{R0+k}")
            if late:
                ring_issue(e, g0 + i + 8)
            for k in range(4):
                e.ins(f"v_pk_fma_f32 {vr(vACC+2*k,2)}, {vr(vU+2*k,2)}, {vr(vP,2)}, {vr(vACC+2*k,2)} op_sel_hi:[1,0,1]")
            if i == 4:
                e.wait((name, "q"), ("wqn", b))
                qpair(e, vW, vW + 4, vXP, vQA)
                if not (late and nboost == 1):
                    wqn_issue(e, ("wqn", b + 1))
        for r in range(7, 0, -1):
            e.ins(f"v_mov_b32 v{vSC+r}, v{vSC+r-1}")
        ctl_fetch(e, name, b)
        e.ins(f"s_add_u32 s{sCNT}, s{sCNT}, 1")

    def b_v0(e, b):
        v_body(e, "v0", b, False, PL or PV, ENTRY + kvx)

    def b_vs(e, b, lo=False):
        if not lo:
            e.label("L_vs")
            if PL:
                pick_lo(e, "L_vsl")
            v_body(e, "vs", b, False, PV)
        else:
            e.label("L_vsl")
            v_body(e, "vsl", b, False, PL)
        e.ins(f"s_cmp_lt_u32 s{sCNT}, {8 - nboost}")
        e.ins("s_cbranch_scc1 L_vs")
        if PL and not lo:
            e.ins("s_branch L_burst")
        if lo:
            e.label("L_burst")

    def b_burst(e, b):
        for g in range(8 * b + ENTRY, 8 * b + 8):
            ring_issue(e, g)

    def b_v8(e, b):
        e.label("L_v8")
        v_body(e, "v8", b, True)
        e.ins(f"s_cmp_lt_u32 s{sCNT}, 8")
        e.ins("s_cbranch_scc1 L_v8")

    def b_epi(e, prob):
        stamp(e, 5)
        rowreduce8(e, vACC, vU, vU + 1)
        e.ins(f"v_cvt_pk_bf16_f32 v{vU+2}, v{vU}, v{vU+1}")
        e.ins(f"ds_write_b32 v{vOWA}, v{vU+2}")
        e.ins(f"v_lshlrev_b32 v{vU+4}, 16, v{vU+2}")
        e.ins(f"v_and_b32 v{vU+5}, s{sMASK}, v{vU+2}")
        e.ins(f"v_sub_f32 v{vU+4}, v{vU}, v{vU+4}")
        e.ins(f"v_sub_f32 v{vU+5}, v{vU+1}, v{vU+5}")
        e.ins(f"v_cvt_pk_bf16_f32 v{vU+3}, v{vU+4}, v{vU+5}")
        e.ins(f"ds_write_b32 v{vOWA}, v{vU+3} offset:{8*OA_STRIDE}")
        e.ins(f"s_cmp_lg_u32 s{sPROB}, 0")
        e.ins("s_cbranch_scc1 L_noq1")
        rowreduce8(e, vQA, vU + 6, vU + 7)
        e.ins(f"ds_write_b64 v{vQWA}, {vr(vU+6,2)}")
        e.ins("s_branch L_noq2")
        e.label("L_noq1")
        e.ins(f"s_sub_u32 s{sT0}, s{sYO}, {16*BLK:#x}")
        if nost < 1:
            e.ins(f"buffer_store_dword v{vYA}, v{vL4}, {sr(sY,4)}, s{sT0} offen{stf}")
        e.label("L_noq2")
        e.ins("s_waitcnt lgkmcnt(0)")
        e.ins("s_barrier")
        for s in range(4):
            e.ins(f"ds_read_b128 {vr(vAF+4*s,4)}, v{vAFA} offset:{64*s}")
        e.ins(f"ds_read_b128 {vr(vML,4)}, v{vMLA}")
        e.ins(f"ds_read_b128 {vr(vML+4,4)}, v{vMLA} offset:16")
        e.ins(f"ds_read_b128 {vr(vML+8,4)}, v{vMLB}")
        e.ins(f"ds_read_b128 {vr(vML+12,4)}, v{vMLB} offset:16")
        for s in range(4):
            e.ins(f"s_waitcnt lgkmcnt({7-s})")
            for t in range(4):
                c = "0" if s == 0 else vr(vD + 4 * t, 4)
                e.ins(f"v_mfma_f32_16x16x32_bf16 {vr(vD+4*t,4)}, {vr(vAF+4*s,4)}, {vr(vBF+16*s+4*t,4)}, {c}")
        e.ins("s_waitcnt lgkmcnt(0)")
        e.ins(f"v_max3_f32 v{vT0}, v{vML}, v{vML+2}, v{vML+4}")
        e.ins(f"v_max3_f32 v{vT0}, v{vML+6}, v{vML+8}, v{vT0}")
        e.ins(f"v_max3_f32 v{vT0}, v{vML+10}, v{vML+12}, v{vT0}")
        e.ins(f"v_max_f32 v{vM}, v{vML+14}, v{vT0}")
        for r in range(8):
            e.ins(f"v_sub_f32 v{vSL+r}, v{vML+2*r}, v{vM}")
        for r in range(8):
            e.ins(f"v_exp_f32 v{vSL+r}, v{vSL+r}")
        for t in range(4):
            e.ins(f"v_mul_f32 v{vU+t}, v{vSL}, v{vD+4*t}")
        for r in range(1, 4):
            for t in range(4):
                e.ins(f"v_fmac_f32 v{vU+t}, v{vSL+r}, v{vD+4*t+r}")
        e.ins(f"v_mul_f32 v{vL}, v{vSL}, v{vML+1}")
        e.ins(f"v_permlane32_swap_b32 v{vU}, v{vU+2}")
        e.ins(f"v_permlane32_swap_b32 v{vU+1}, v{vU+3}")
        e.ins(f"v_fmac_f32 v{vL}, v{vSL+1}, v{vML+3}")
        e.ins(f"v_add_f32 v{vU}, v{vU}, v{vU+2}")
        e.ins(f"v_add_f32 v{vU+1}, v{vU+1}, v{vU+3}")
        e.ins(f"v_fmac_f32 v{vL}, v{vSL+2}, v{vML+5}")
        e.ins(f"v_fmac_f32 v{vL}, v{vSL+3}, v{vML+7}")
        e.ins(f"v_permlane16_swap_b32 v{vU}, v{vU+1}")
        e.ins(f"v_add_f32 v{vU}, v{vU}, v{vU+1}")
        e.ins(f"s_cmp_lg_u32 s{sPROB}, 0")
        e.ins("s_cbranch_scc0 L_keep")
        if nost < 2:
            e.ins(f"buffer_store_dword v{vU}, v{vL4}, {sr(sY,4)}, s{sYO} offen{stf}")
        e.ins(f"s_cmp_lg_u32 s{sWAVE}, 0")
        e.ins("s_cbranch_scc1 L_fin")
        for r in range(4, 8):
            e.ins(f"v_fmac_f32 v{vL}, v{vSL+r}, v{vML+2*r+1}")
        e.ins("s_mov_b64 exec, 0xff")
        e.ins(f"buffer_store_dwordx4 {vr(vMA,4)}, v{vL16}, {sr(sY,4)}, s{sMO} offen{stf}")
        e.ins("s_branch L_fin")
        e.label("L_keep")
        for r in range(4, 8):
            e.ins(f"v_fmac_f32 v{vL}, v{vSL+r}, v{vML+2*r+1}")
        e.ins(f"v_mov_b32 v{vYA}, v{vU}")
        e.ins(f"v_mov_b32 v{vMA}, v{vM}")
        e.ins(f"v_mov_b32 v{vMA+1}, v{vL}")
        for w in range(8):
            e.ins(f"ds_read_b64 {vr(vS+2*w,2)}, v{vQRA} offset:{w*512}")
        e.ins(f"s_mov_b32 s{sPROB}, 1")
        e.ins(f"s_mov_b32 s{sCNT}, 0")
        e.ins(f"s_mov_b32 s{sNX}, s{sVB}")
        e.ins(f"s_mov_b32 s{sNX+1}, s{sVB+1}")
        e.ins(f"s_mov_b32 s{sKN+2}, 0")
        e.ins(f"s_mov_b32 s{sWQ+2}, 0")
        e.ins(f"s_mov_b32 s{sX+2}, 0")
        e.ins(f"s_mov_b32 s{sWO}, s{sP+18}")
        e.ins(f"s_mov_b32 s{sWO+1}, s{sP+19}")
        e.ins(f"s_mov_b32 s{sSO}, 0")
        e.ins(f"s_lshl_b32 s{sM0N}, s{sWAVE}, 14")
        e.ins(f"s_add_u32 s{sYO}, s{sYO}, {16*BLK:#x}")
        e.ins(f"v_add_u32 v{vOWA}, {OA_SIZE:#x}, v{vOWA}")
        e.ins(f"v_add_u32 v{vAFA}, {OA_SIZE:#x}, v{vAFA}")
        e.ins(f"v_add_u32 v{vMWA}, 64, v{vMWA}")
        e.ins(f"v_add_u32 v{vMLA}, 64, v{vMLA}")
        e.ins(f"v_add_u32 v{vMLB}, 64, v{vMLB}")
        e.ins("s_waitcnt lgkmcnt(0)")
        q_final(e)
        if diag:
            e.ins(f"s_mov_b32 s{sST+2}, s{sST+8}")
            e.ins(f"s_mov_b32 s{sST+4}, s{sST+10}")
        stamp(e, 6)
        e.ins("s_nop 1")
        e.ins("s_branch L_prob")
        e.label("L_fin")

    assert vL == vM + 1 and vM % 2 == 0

    import random
    rnd = random.Random(1)
    N = {}
    for trial in range(200 if PL else 1):
        pick = (lambda: False) if not PL else (lambda: True) if trial == 0 else (lambda: False) if trial == 1 else \
            (lambda: rnd.random() < 0.5)
        sim = Sim()
        sim.N = N
        b_prologue(sim)
        for prob in range(2):
            b0 = 16 * prob
            k1 = 1 if (kl and prob == 0) else 0
            if k1:
                b_kl(sim)
            b_k0(sim, b0 + k1)
            for b in range(1 + k1, 8):
                b_ks(sim, b0 + b, pick())
            b_kv(sim, b0 + 8)
            if kvx:
                b_v0(sim, b0 + 8)
            for b in range(9 if kvx else 8, 16 - nboost):
                b_vs(sim, b0 + b, pick())
            b_burst(sim, b0 + 16 - nboost)
            for b in range(16 - nboost, 16):
                b_v8(sim, b0 + b)
            b_epi(sim, prob)
    e = Emit(a, N)
    assert F0 == 8
    b_prologue(e)
    if kl:
        b_kl(e)
    b_k0(e, 0)
    b_ks(e, 1)
    if PL:
        b_ks(e, 1, True)
    b_kv(e, 8)
    if kvx:
        b_v0(e, 8)
    b_vs(e, 8)
    if PL:
        b_vs(e, 8, True)
    b_burst(e, 16 - nboost)
    b_v8(e, 14)
    b_epi(e, 0)
    if diag:
        a("s_mov_b64 exec, 1")
        a("s_waitcnt vmcnt(0)")
        a(f"s_memrealtime {sr(sST+14,2)}")
        a(f"s_add_u32 s80, s{sWS}, 0x400000")
        a(f"s_addc_u32 s81, s{sWS+1}, 0")
        a("s_mov_b32 s82, 0x100000")
        a("s_mov_b32 s83, 0x00020000")
        a(f"s_lshl_b32 s{sT0}, s{sWG}, 3")
        a(f"s_add_u32 s{sT0}, s{sT0}, s{sWAVE}")
        a(f"s_lshl_b32 s{sT0}, s{sT0}, 5")
        a(f"s_getreg_b32 s{sT1}, hwreg(HW_REG_XCC_ID)")
        a("s_waitcnt lgkmcnt(0)")
        for i, si in enumerate((0, 1, 2, 3, 5, 7)):
            a(f"v_mov_b32 v{vACC+i}, s{sST+2*si}")
        a(f"v_mov_b32 v{vACC+6}, s{sST+8}")
        a(f"v_mov_b32 v{vACC+7}, s{sST+12}")
        a(f"buffer_store_dwordx4 {vr(vACC,4)}, v{vL4}, s[80:83], s{sT0} offen")
        a(f"buffer_store_dwordx4 {vr(vACC+4,4)}, v{vL4}, s[80:83], s{sT0} offen offset:16")
    a.label("L_attn_end")
    a("s_endpgm")
    return a, NSGPR, N


def gen_reduce(diag=False, k2w=1):
    a = Asm()
    a.valloc(1)
    vOFF, vT0, vT1, vT2, vOO = [a.valloc() for _ in range(5)]
    vWg = a.valloc(2, 2)
    vML = a.valloc(4, 4)
    vACC = a.valloc(4, 4)
    vY = a.valloc(32, 4)
    Q1, Q2 = "quad_perm:[1,0,3,2] row_mask:0xf bank_mask:0xf", "quad_perm:[2,3,0,1] row_mask:0xf bank_mask:0xf"
    a.label("reduce_kernel")
    a("s_load_dwordx2 s[6:7], s[0:1], 96")
    a("s_load_dwordx2 s[4:5], s[0:1], 80")
    a(f"s_cmp_ge_u32 s2, {128 // k2w}")
    a("s_cbranch_scc1 L_red_end")
    if k2w > 1:
        a(f"v_lshrrev_b32 v{vT0}, 6, v0")
        a("v_and_b32 v0, 63, v0")
        a(f"v_readfirstlane_b32 s3, v{vT0}")
        a(f"s_mul_i32 s2, s2, {k2w}")
        a("s_add_u32 s2, s2, s3")
    if diag:
        a("s_memrealtime s[24:25]")
    a("s_lshr_b32 s3, s2, 2")
    a("s_lshl_b32 s16, s3, 15")
    a("s_and_b32 s17, s2, 3")
    a("s_lshl_b32 s18, s17, 6")
    a("s_add_u32 s16, s16, s18")
    a("s_add_u32 s18, s16, 0x4000")
    a(f"v_lshrrev_b32 v{vT0}, 2, v0")
    a(f"v_and_b32 v{vT1}, 3, v0")
    a(f"v_lshlrev_b32 v{vT1}, 4, v{vT1}")
    a(f"v_lshl_add_u32 v{vOFF}, v{vT0}, 10, v{vT1}")
    a(f"v_lshlrev_b32 v{vT2}, 7, v0")
    a("s_bfe_u32 s19, s2, 0x10005")
    a("s_lshl_b32 s20, s19, 14")
    a("s_lshr_b32 s21, s2, 6")
    a("s_lshl_b32 s22, s21, 3")
    a("s_add_u32 s20, s20, s22")
    a(f"s_add_u32 s20, s20, {ML_OFF:#x}")
    a("s_add_u32 s22, s20, 0x2000")
    a(f"s_mov_b32 s10, {ML_OFF + 256 * 128:#x}")
    a("s_mov_b32 s11, 0x00020000")
    a("s_mov_b32 s14, 4096")
    a("s_mov_b32 s15, 0x00020000")
    a("s_waitcnt lgkmcnt(0)")
    a("s_mov_b32 s8, s6")
    a("s_mov_b32 s9, s7")
    a(f"buffer_load_dwordx2 {vr(vML,2)}, v{vT2}, s[8:11], s20 offen")
    a(f"buffer_load_dwordx2 {vr(vML+2,2)}, v{vT2}, s[8:11], s22 offen")
    for i in range(8):
        a(f"buffer_load_dwordx4 {vr(vY+4*i,4)}, v{vOFF}, s[8:11], s{16 if i < 4 else 18} offen offset:{(i%4)*256}")
    a("s_mov_b32 s12, s4")
    a("s_mov_b32 s13, s5")
    a("s_lshl_b32 s19, s19, 11")
    a("s_lshl_b32 s21, s21, 10")
    a("s_add_u32 s19, s19, s21")
    a("s_and_b32 s21, s2, 31")
    a("s_lshl_b32 s21, s21, 5")
    a("s_add_u32 s19, s19, s21")
    a(f"v_lshrrev_b32 v{vT0}, 4, v0")
    a(f"v_lshrrev_b32 v{vT1}, 1, v{vT1}")
    a(f"v_lshl_add_u32 v{vOO}, v{vT0}, 1, v{vT1}")
    a("s_mov_b32 s26, 0x000f000f")
    a("s_mov_b32 s27, 0x000f000f")
    a("s_waitcnt vmcnt(8)")
    a(f"v_max_f32_dpp v{vT0}, v{vML}, v{vML} {Q1}")
    a(f"v_max_f32_dpp v{vT1}, v{vML+2}, v{vML+2} {Q1}")
    a(f"v_max_f32_dpp v{vT0}, v{vT0}, v{vT0} {Q2}")
    a(f"v_max_f32_dpp v{vT1}, v{vT1}, v{vT1} {Q2}")
    a(f"v_sub_f32 v{vWg}, v{vML}, v{vT0}")
    a(f"v_sub_f32 v{vWg+1}, v{vML+2}, v{vT1}")
    a(f"v_exp_f32 v{vWg}, v{vWg}")
    a(f"v_exp_f32 v{vWg+1}, v{vWg+1}")
    a(f"v_mul_f32 v{vT0}, v{vWg}, v{vML+1}")
    a(f"v_mul_f32 v{vT1}, v{vWg+1}, v{vML+3}")
    a(f"v_add_f32_dpp v{vT0}, v{vT0}, v{vT0} {Q1}")
    a(f"v_add_f32_dpp v{vT1}, v{vT1}, v{vT1} {Q1}")
    a(f"v_add_f32_dpp v{vT0}, v{vT0}, v{vT0} {Q2}")
    a(f"v_add_f32_dpp v{vT1}, v{vT1}, v{vT1} {Q2}")
    a(f"v_rcp_f32 v{vT0}, v{vT0}")
    a(f"v_rcp_f32 v{vT1}, v{vT1}")
    a(f"v_mul_f32 v{vWg}, v{vWg}, v{vT0}")
    a(f"v_mul_f32 v{vWg+1}, v{vWg+1}, v{vT1}")
    for i in range(8):
        a(f"s_waitcnt vmcnt({7-i})")
        j = i & 3
        for k in range(4):
            op = "v_mul_f32_dpp" if i == 0 else "v_fmac_f32_dpp"
            a(f"{op} v{vACC+k}, v{vWg+(i>>2)}, v{vY+4*i+k} quad_perm:[{j},{j},{j},{j}] row_mask:0xf bank_mask:0xf")
    for st in (8, 4):
        for k in range(4):
            a(f"v_add_f32_dpp v{vACC+k}, v{vACC+k}, v{vACC+k} row_ror:{st} row_mask:0xf bank_mask:0xf")
    a(f"v_permlane32_swap_b32 v{vACC}, v{vACC+2}")
    a(f"v_permlane32_swap_b32 v{vACC+1}, v{vACC+3}")
    a(f"v_add_f32 v{vACC}, v{vACC}, v{vACC+2}")
    a(f"v_add_f32 v{vACC+1}, v{vACC+1}, v{vACC+3}")
    a(f"v_permlane16_swap_b32 v{vACC}, v{vACC+1}")
    a(f"v_add_f32 v{vACC}, v{vACC}, v{vACC+1}")
    a(f"v_cvt_pk_bf16_f32 v{vACC}, v{vACC}, v{vACC}")
    a("s_mov_b64 exec, s[26:27]")
    a(f"buffer_store_short v{vACC}, v{vOO}, s[12:15], s19 offen")
    if diag:
        a("s_waitcnt vmcnt(0)")
        a("s_memrealtime s[26:27]")
        a("s_add_u32 s28, s6, 0x410000")
        a("s_addc_u32 s29, s7, 0")
        a("s_mov_b32 s30, 0x100000")
        a("s_mov_b32 s31, 0x00020000")
        a("s_lshl_b32 s3, s2, 3")
        a("s_waitcnt lgkmcnt(0)")
        a(f"v_mov_b32 v{vACC}, s24")
        a(f"v_mov_b32 v{vACC+1}, s26")
        a(f"v_mov_b32 v{vT0}, 0")
        a("s_mov_b64 exec, 1")
        a(f"buffer_store_dwordx2 {vr(vACC,2)}, v{vT0}, s[28:31], s3 offen")
    a.label("L_red_end")
    a("s_endpgm")
    return a, 32


def build(**kw):
    k2w = kw.pop("k2w", 1)
    a1, s1, N = gen_attn(**kw)
    a2, s2 = gen_reduce(kw.get("diag", False), k2w)
    k1 = NAME + "_kernel"
    out = HEADER
    out += f"; @launch kernel={k1} grid=(256,1,1) block=(512,1,1) lds={LDS_TOTAL}\n"
    out += f"; @launch kernel=reduce_kernel grid=({128 // k2w},1,1) block=({64 * k2w},1,1) lds=0\n"
    out += DOC
    out += '.amdgcn_target "amdgcn-amd-amdhsa--gfx950"\n.text\n'
    out += f".globl {k1}\n.p2align 8\n.type {k1},@function\n" + a1.text()
    out += ".globl reduce_kernel\n.p2align 8\n.type reduce_kernel,@function\n" + a2.text()
    out += '.section .rodata,"a"\n.p2align 6\n' + kd(k1, a1, s1) + ".p2align 6\n" + kd("reduce_kernel", a2, s2)
    return out, N


if __name__ == "__main__":
    import argparse
    ap = argparse.ArgumentParser()
    ap.add_argument("-o", default=f"cdna_kernels/{NAME}.s")
    ap.add_argument("--F", default="4")
    ap.add_argument("--kv", default="nt")
    ap.add_argument("--wf", default="nt")
    ap.add_argument("--diag", action="store_true")
    ap.add_argument("--map", default="p67501234")
    ap.add_argument("--noq", action="store_true")
    ap.add_argument("--pbar", action="store_true")
    ap.add_argument("--nboost", type=int, default=2)
    ap.add_argument("-v", action="store_true")
    ap.add_argument("--Flo", default=None)
    ap.add_argument("--ctl", default=None)
    ap.add_argument("--theta", type=int, default=32)
    ap.add_argument("--mdf", default="")
    ap.add_argument("--cx", default="las")
    ap.add_argument("--pf", default="sc1")
    ap.add_argument("--defer", action="store_true")
    ap.add_argument("--touch", action="store_true")
    ap.add_argument("--stf", default="")
    ap.add_argument("--lay", default="A")
    ap.add_argument("--rot", default=None)
    ap.add_argument("--prio", type=int, default=0)
    ap.add_argument("--kl", type=int, default=0)
    ap.add_argument("--tog", action="store_true")
    ap.add_argument("--FV", default=None)
    ap.add_argument("--rf", type=int, default=0)
    ap.add_argument("--skew", type=int, default=0)
    ap.add_argument("--qmap", type=int, default=0)
    ap.add_argument("--noqb", action="store_true")
    ap.add_argument("--nost", type=int, default=0)
    ap.add_argument("--k2w", type=int, default=1)
    ap.add_argument("--kvx", type=int, default=0)
    args = ap.parse_args()
    out, N = build(F=[int(x) for x in args.F.split(",")], kvflags=args.kv, wflags=args.wf, diag=args.diag, wmap=args.map, noq=args.noq,
                   nboost=args.nboost, pbar=args.pbar,
                   Flo=[int(x) for x in args.Flo.split(",")] if args.Flo else None, ctl=args.ctl, theta=args.theta, cx=args.cx, pf=args.pf, defer=args.defer, touch=args.touch, lay=args.lay, prio=args.prio, kl=args.kl, tog=args.tog, rf=args.rf, skew=args.skew, qmap=args.qmap, noqb=args.noqb, nost=args.nost, k2w=args.k2w, kvx=args.kvx, FV=[int(x) for x in args.FV.split(",")] if args.FV else None, rot=tuple(int(x) for x in args.rot.split(",")) if args.rot else None, stf=(" " + args.stf) if args.stf else "", mdf=(" " + args.mdf) if args.mdf else "")
    open(args.o, "w").write(out)
    if args.v:
        print(N)
```
